```python
import torch

def _softmax(x, axis=-1):
    return torch.softmax(x, dim=axis)
def _gelu(x):
    return torch.nn.functional.gelu(x, approximate="tanh")
def _silu(x):
    return torch.nn.functional.silu(x)
def _sigmoid(x):
    return torch.sigmoid(x)
def _layernorm(x, axis=-1, eps=1e-5):
    m = x.mean(dim=axis, keepdim=True)
    v = x.var(dim=axis, keepdim=True, unbiased=False)
    return (x - m) / torch.sqrt(v + eps)
def _scatter_add(tgt, idx, src, axis=0):
    return tgt.clone().index_add_(axis, idx, src)
def _segment_sum(src, seg, n):
    out = torch.zeros((n,) + src.shape[1:], dtype=src.dtype)
    return out.index_add_(0, seg, src)
def _pad(x, pw):
    flat = tuple(v for pair in reversed(pw) for v in pair)
    return torch.nn.functional.pad(x, flat)

kernel_name = 'parallel_sum__sliding_block__glu_gated_glu__prompt'

def setup_inputs():

    _w = (lambda a: (lambda t: t.to(torch.bfloat16) if t.is_floating_point() else t)(torch.as_tensor(a)))
    def _A_setup():
        B, S, D = 1, 2048, 640
        return {
            "x": _w((lambda *s: torch.randn(*s, dtype=torch.bfloat16) * 0.05)(B, S, D)),
            "wqkv": _w((lambda *s: torch.randn(*s, dtype=torch.bfloat16) * 0.05)(D, 3 * D)),
            "wo": _w((lambda *s: torch.randn(*s, dtype=torch.bfloat16) * 0.05)(D, D)),
        }
    _A_in = _A_setup()

    def _B_setup():
        B, S, D, F = 1, 2048, 640, 1536
        return {
            "x": _w((lambda *s: torch.randn(*s, dtype=torch.bfloat16) * 0.05)(B, S, D)),
            "w_gate": _w((lambda *s: torch.randn(*s, dtype=torch.bfloat16) * 0.05)(D, F)),
            "w_up": _w((lambda *s: torch.randn(*s, dtype=torch.bfloat16) * 0.05)(D, F)),
            "w_down": _w((lambda *s: torch.randn(*s, dtype=torch.bfloat16) * 0.05)(F, D)),
        }
    _B_in = _B_setup()

    return {
        "A_x": _A_in["x"],
        "A_wqkv": _A_in["wqkv"],
        "A_wo": _A_in["wo"],
        "B_x": _B_in["x"],
        "B_w_gate": _B_in["w_gate"],
        "B_w_up": _B_in["w_up"],
        "B_w_down": _B_in["w_down"],
    }

def reference(A_x, A_wqkv, A_wo, B_x, B_w_gate, B_w_up, B_w_down):
    def _A_ref(x, wqkv, wo):
        B, S, D = x.shape
        H = 32; Dh = D // H; W = 256
        qkv = (lambda x, *d: x.permute(*d))((x @ wqkv).reshape(B, S, 3, H, Dh), 2, 0, 3, 1, 4)
        q, k, v = qkv[0], qkv[1], qkv[2]
        scores = torch.einsum("bhqd,bhkd->bhqk", q, k) * (Dh ** -0.5)
        idx = torch.arange(S)
        mask = (idx[:, None] - idx[None, :] >= 0) & (idx[:, None] - idx[None, :] < W)
        scores = torch.where(mask[None, None], scores, -1e9)
        p = _softmax(scores, axis=-1)
        o = torch.einsum("bhqk,bhkd->bhqd", p, v)
        return (lambda x, *d: x.permute(*d))(o, 0, 2, 1, 3).reshape(B, S, D) @ wo

    def _B_ref(x, w_gate, w_up, w_down):
        g = torch.einsum("bsd,df->bsf", x, w_gate)
        u = torch.einsum("bsd,df->bsf", x, w_up)
        h = _sigmoid(g) * u
        return torch.einsum("bsf,fd->bsd", h, w_down)

    x = A_x
    xn = _layernorm(x, axis=-1)
    return x + _A_ref(xn, A_wqkv, A_wo) + _B_ref(xn, B_w_gate, B_w_up, B_w_down)
```

```python
class Ins:
    __slots__ = ("text", "kind", "tag", "cnt")
    def __init__(self, text, kind="op", tag=None):
        self.text = text; self.kind = kind; self.tag = tag

class Asm:
    def __init__(self):
        self.L = []
    def op(self, text):
        self.L.append(Ins(text)); return self
    def ops(self, lst):
        for t in lst:
            self.add(t)
    def add(self, x):
        if isinstance(x, Ins): self.L.append(x)
        elif isinstance(x, (list, tuple)):
            for y in x: self.add(y)
        else: self.L.append(Ins(x))
    def label(self, name):
        self.L.append(Ins(name + ":", "label"))
    def comment(self, t):
        self.L.append(Ins("; " + t, "comment"))
    def raw(self, t):
        self.L.append(Ins(t, "raw"))

def vm(text, tag=None):
    return Ins(text, "vm", tag)
def ds(text, tag=None):
    return Ins(text, "ds", tag)
def wait_vm(tag):
    return Ins(None, "wait_vm", tag)
def wait_ds(tag):
    return Ins(None, "wait_ds", tag)
def reset_counters():
    return Ins(None, "reset")

def resolve(L):
    out = []
    vq, dq = [], []
    for i in L:
        if i.kind == "vm":
            vq.append(i.tag); out.append("    " + i.text)
        elif i.kind == "ds":
            dq.append(i.tag); out.append("    " + i.text)
        elif i.kind == "wait_vm":
            idx = [k for k, t in enumerate(vq) if t == i.tag]
            if not idx:
                continue
            n = len(vq) - 1 - idx[-1]
            n = min(n, 63)
            out.append(f"    s_waitcnt vmcnt({n})")
            vq = vq[len(vq) - n:] if n else []
        elif i.kind == "wait_ds":
            idx = [k for k, t in enumerate(dq) if t == i.tag]
            if not idx:
                continue
            n = len(dq) - 1 - idx[-1]
            n = min(n, 15)
            out.append(f"    s_waitcnt lgkmcnt({n})")
            dq = dq[len(dq) - n:] if n else []
        elif i.kind == "reset":
            vq, dq = [], []
        elif i.kind in ("label", "raw"):
            out.append(i.text)
        elif i.kind == "comment":
            out.append("    " + i.text)
        else:
            t = i.text
            out.append("    " + t)
            if t.startswith("s_waitcnt"):
                if "vmcnt(0)" in t: vq = []
                if "lgkmcnt(0)" in t: dq = []
        assert len(vq) <= 63, "too many outstanding vm ops"
    return "\n".join(out)

def vr(a, n=1):
    return f"v{a}" if n == 1 else f"v[{a}:{a+n-1}]"
def ar(a, n=1):
    return f"a{a}" if n == 1 else f"a[{a}:{a+n-1}]"
def sr(a, n=1):
    return f"s{a}" if n == 1 else f"s[{a}:{a+n-1}]"
```

```python
from common import *
import struct
def f2u(f): return struct.unpack("<I", struct.pack("<f", f))[0]

A_K1 = 0
A_V = 40
V_K2 = 16
V_Q1 = 36
V_Q2 = 44
V_MD = 48
V_MO = 64
V_C = 80
V_S = 176
V_O = 224
V_M = 8
S_HD, S_QP, S_A, S_B, S_C, S_D = 66, 67, 68, 69, 70, 71
S_EX = 72
S_KB, S_K2B, S_VB = 74, 75, 76
S_T1 = 77
NEG = f2u(-1e30)
NEG_BF16 = NEG >> 16

def attn_setup_and_loads(a, sc=""):
    a.op(f"s_and_b32 s{S_HD}, s2, 7")
    a.op(f"s_lshl_b32 s{S_HD}, s{S_HD}, 2")
    a.op(f"s_add_u32 s{S_HD}, s{S_HD}, s{S_WAVE}")
    a.op(f"s_lshr_b32 s{S_QP}, s2, 3")
    a.op(f"s_mul_i32 s{S_A}, s{S_HD}, 5")
    a.op(f"s_add_u32 s{S_A}, s{S_A}, 1")
    a.op(f"s_lshr_b32 s{S_A}, s{S_A}, 1")
    a.op(f"s_lshl_b32 s{S_KB}, s{S_A}, 15")
    a.op(f"s_and_b32 s{S_D}, s{S_HD}, 1")
    a.op(f"s_cmp_eq_u32 s{S_D}, 1")
    a.op(f"s_mov_b32 s{S_B}, {2*CHUNK}")
    a.op(f"s_cselect_b32 s{S_B}, {hex((-CHUNK + 8) & 0xffffffff)}, s{S_B}")
    a.op(f"s_add_u32 s{S_K2B}, s{S_KB}, s{S_B}")
    a.op("v_and_b32 v1, 31, v0")
    a.op("v_lshrrev_b32 v2, 5, v0")
    a.op("v_lshlrev_b32 v3, 4, v1")
    a.op("v_lshl_add_u32 v4, v2, 15, v3")
    a.op(f"s_lshl_b32 s{S_C}, s{S_QP}, 10")
    a.op(f"s_add_u32 s{S_A}, s{S_KB}, s{S_C}")
    a.op(f"s_add_u32 s{S_A}, s{S_A}, {OFF_QK}")
    for qb in range(2):
        a.add(vm(f"buffer_load_dwordx4 {vr(V_Q1+4*qb,4)}, v4, s[{SRD_WS}:{SRD_WS+3}], s{S_A} offen offset:{512*qb}{sc}", ("q1", qb)))
    a.op(f"s_add_u32 s{S_A}, s{S_K2B}, s{S_C}")
    a.op(f"s_add_u32 s{S_A}, s{S_A}, {OFF_QK}")
    for qb in range(2):
        a.add(vm(f"buffer_load_dwordx2 {vr(V_Q2+2*qb,2)}, v3, s[{SRD_WS}:{SRD_WS+3}], s{S_A} offen offset:{512*qb}{sc}", ("q2", qb)))
    a.op(f"s_add_u32 s{S_KB}, s{S_KB}, {OFF_QK + 80*CHUNK}")
    a.op(f"s_add_u32 s{S_K2B}, s{S_K2B}, {OFF_QK + 80*CHUNK}")
    a.op(f"s_lshl_b32 s{S_C}, s{S_QP}, 1")
    a.op(f"s_sub_u32 s{S_C}, s{S_C}, 8")
    for j in range(10):
        a.op(f"s_add_u32 s{S_A}, s{S_C}, {j}")
        a.op(f"s_cmp_lt_i32 s{S_A}, 0")
        a.op(f"s_cselect_b32 s{S_B}, {NEG_BF16}, 0")
        a.op(f"s_max_i32 s{S_A}, s{S_A}, 0")
        a.op(f"v_mov_b32 v{V_K2+2*j}, s{S_B}")
        a.op(f"v_mov_b32 v{V_K2+2*j+1}, 0")
        a.op(f"s_lshl_b32 s{S_A}, s{S_A}, 9")
        a.op(f"s_add_u32 s{S_B}, s{S_A}, s{S_KB}")
        a.add(vm(f"buffer_load_dwordx4 {ar(A_K1+4*j,4)}, v4, s[{SRD_WS}:{SRD_WS+3}], s{S_B} offen{sc}", ("k1", j)))
        a.op(f"s_add_u32 s{S_B}, s{S_A}, s{S_K2B}")
        a.op("s_mov_b32 exec_hi, 0")
        a.add(vm(f"buffer_load_dwordx2 {vr(V_K2+2*j,2)}, v3, s[{SRD_WS}:{SRD_WS+3}], s{S_B} offen{sc}", ("k2", j)))
        a.op("s_mov_b64 exec, -1")
    a.op("v_bfe_u32 v5, v0, 2, 1")
    a.op("v_bfe_u32 v6, v0, 3, 1")
    a.op("v_lshl_or_b32 v5, v5, 1, v6")
    a.op("v_and_b32 v6, 3, v0")
    a.op("v_lshl_add_u32 v5, v5, 2, v6")
    a.op(f"s_lshl_b32 s{S_A}, s{S_D}, 2")
    a.op(f"v_add_u32 v5, s{S_A}, v5")
    a.op(f"s_lshl_b32 s{S_A}, s{S_D}, 4")
    a.op(f"v_subrev_u32 v6, s{S_A}, v1")
    a.op("v_cmp_gt_u32 vcc, 16, v1")
    a.op("s_nop 1")
    a.op("v_cndmask_b32 v5, v6, v5, vcc")
    a.op("v_mul_u32_u24 v6, 10240, v2")
    a.op("v_lshl_add_u32 v5, v5, 4, v6")
    a.op(f"v_cmp_gt_u32 s[{S_EX}:{S_EX+1}], 20, v1")
    a.op(f"s_mul_i32 s{S_VB}, s{S_HD}, 320")
    a.op(f"s_add_u32 s{S_VB}, s{S_VB}, {OFF_V}")
    a.op("v_mov_b32 v6, 0x3f803f80")
    for r in range(80):
        a.op(f"v_accvgpr_write_b32 a{A_V+r}, v6")
    a.op(f"s_mov_b64 exec, s[{S_EX}:{S_EX+1}]")
    for j in range(10):
        a.op(f"s_add_u32 s{S_A}, s{S_C}, {j}")
        a.op(f"s_max_i32 s{S_A}, s{S_A}, 0")
        a.op(f"s_mul_i32 s{S_A}, s{S_A}, 40960")
        a.op(f"s_add_u32 s{S_A}, s{S_A}, s{S_VB}")
        a.add(vm(f"buffer_load_dwordx4 {ar(A_V+8*j,4)}, v5, s[{SRD_WS}:{SRD_WS+3}], s{S_A} offen{sc}", ("v", j, 0)))
        a.op(f"s_add_u32 s{S_A}, s{S_A}, 20480")
        a.add(vm(f"buffer_load_dwordx4 {ar(A_V+8*j+4,4)}, v5, s[{SRD_WS}:{SRD_WS+3}], s{S_A} offen{sc}", ("v", j, 1)))
    a.op("s_mov_b64 exec, -1")
    a.op("v_lshlrev_b32 v6, 2, v2")
    a.op("v_sub_u32 v6, v1, v6")
    a.op(f"v_mov_b32 v7, {hex(NEG)}")
    for r in range(16):
        kl = 8*(r >> 2) + (r & 3)
        a.op(f"v_cmp_le_i32 vcc, {kl}, v6")
        a.op("s_nop 1")
        a.op(f"v_cndmask_b32 v{V_MD+r}, v7, 0, vcc")
        a.op(f"v_cndmask_b32 v{V_MO+r}, 0, v7, vcc")
    a.add(wait_vm(("q2", 1)))
    a.op("v_cmp_gt_u32 vcc, 32, v0")
    a.op(f"v_mov_b32 v7, 0x3f80")
    for qb in range(2):
        a.op(f"v_cndmask_b32 v{V_Q2+2*qb}, v7, v{V_Q2+2*qb}, vcc")
        a.op(f"v_cndmask_b32 v{V_Q2+2*qb+1}, 0, v{V_Q2+2*qb+1}, vcc")

def qk(qb, j, dst, c):
    return [wait_vm(("k1", j)),
            f"v_mfma_f32_32x32x16_bf16 {vr(dst,16)}, {ar(A_K1+4*j,4)}, {vr(V_Q1+4*qb,4)}, {c}",
            wait_vm(("k2", j)),
            f"v_mfma_f32_32x32x8_bf16 {vr(dst,16)}, {vr(V_K2+2*j,2)}, {vr(V_Q2+2*qb,2)}, {vr(dst,16)}"]

def attn_compute(a, sc=""):
    units = []
    for qb in range(2):
        for i in range(9): units.append(("P1", qb, i))
    order = [("P1", 0, i) for i in range(9)]
    seq = [("P1", 1, 0), ("FIN", 0, 0), ("P1", 1, 1)]
    for i in range(9):
        seq.append(("P2", 0, i))
        if i + 2 < 9: seq.append(("P1", 1, i+2))
        if i == 7: seq.append(("FIN", 1, 0))
    order += seq + [("P2", 1, i) for i in range(9)]
    sbuf = {}
    n = 0
    for u in order:
        if u[0] != "FIN":
            sbuf[u] = V_S + 16*(n % 3); n += 1
    def mf(u):
        kind, qb, i = u
        if kind == "FIN": return []
        j = qb + i
        if kind == "P1":
            c = vr(V_MO, 16) if i == 0 else (vr(V_MD, 16) if i == 8 else "0")
        else:
            cb = V_C + 48*qb
            c = vr(cb + 16, 16) if i == 0 else (vr(cb + 32, 16) if i == 8 else vr(cb, 16))
        return qk(qb, j, sbuf[u], c)
    def valu(u):
        kind, qb, i = u
        m = V_M + qb
        if kind == "P1":
            s = sbuf[u]
            L = []
            if i == 0:
                L.append(f"v_max3_f32 v{m}, v{s}, v{s+1}, v{s+2}")
                L.append(f"v_max_f32 v{m}, v{m}, v{s+3}")
                rest = range(4, 16, 2)
            else:
                rest = range(0, 16, 2)
            for r in rest:
                L.append(f"v_max3_f32 v{m}, v{m}, v{s+r}, v{s+r+1}")
            return L, []
        if kind == "FIN":
            cb = V_C + 48*qb
            L = [f"v_mov_b32 v10, v{m}", "s_nop 1", f"v_permlane32_swap_b32 v{m}, v10", "s_nop 1",
                 f"v_max_f32 v{m}, v{m}, v10"]
            for r in range(16): L.append(f"v_sub_f32 v{cb+16+r}, v{V_MO+r}, v{m}")
            for r in range(16): L.append(f"v_sub_f32 v{cb+r}, 0, v{m}")
            for r in range(16): L.append(f"v_sub_f32 v{cb+32+r}, v{V_MD+r}, v{m}")
            L.append("s_nop 1")
            return L, []
        s = sbuf[u]; j = qb + i
        L = []
        post = []
        for t in range(2):
            b = s + 8*t
            for r in range(8): L.append(f"v_exp_f32 v{b+r}, v{b+r}")
            L.append("s_nop 0")
            for k in range(4): L.append(f"v_cvt_pk_bf16_f32 v{b+k}, v{b+2*k}, v{b+2*k+1}")
        o = V_O + 16*qb
        for t in range(2):
            c = "0" if (i == 0 and t == 0) else vr(o, 16)
            post.append([wait_vm(("v", j, t)), f"v_mfma_f32_32x32x16_bf16 {vr(o,16)}, {ar(A_V+8*j+4*t,4)}, {vr(s+8*t,4)}, {c}"])
        return L, post
    a.add(wait_vm(("q1", 1)))
    a.op("s_nop 1")
    a.add(mf(order[0]))
    pend_pv = []
    for n, u in enumerate(order):
        nxt = order[n+1] if n + 1 < len(order) else None
        L, post = valu(u)
        M = []
        M += pend_pv
        if nxt is not None:
            g = mf(nxt)
            if g: M += [g[0:2], g[2:4]]
        late = (u[0] == "FIN" and nxt is not None and nxt[0] == "P2" and nxt[1] == u[1])
        if late:
            raise Exception("order violates FIN->P2 distance")
        if not M:
            a.op("s_nop 7"); a.op("s_nop 7")
            a.add(L)
        else:
            k = len(M)
            per = max(1, len(L) // k)
            pos = 0
            for gi, g in enumerate(M):
                a.add(g)
                if gi == 0:
                    a.op("s_nop 7")
                    a.op("s_nop 3")
                seg = L[pos:pos+per] if gi < k-1 else L[pos:]
                a.add(seg); pos += per
        pend_pv = post
    a.op("s_nop 1")
    for g in pend_pv: a.add(g)
    a.op("s_nop 15")
    a.op(f"s_lshl_b32 s{S_C}, s{S_QP}, 10")
    a.op(f"s_add_u32 s{S_A}, s{S_KB}, s{S_C}")
    a.op(f"s_add_u32 s{S_A}, s{S_A}, {(OFF_ACT + 192*CHUNK - OFF_QK - 80*CHUNK)}")
    a.op(f"s_add_u32 s{S_B}, s{S_K2B}, s{S_C}")
    a.op(f"s_add_u32 s{S_B}, s{S_B}, {(OFF_ACT + 192*CHUNK - OFF_QK - 80*CHUNK)}")
    for qb in range(2):
        o = V_O + 16*qb
        a.op(f"v_rcp_f32 v{10+qb}, v{o+12}")
    a.op("s_nop 0")
    for qb in range(2):
        o = V_O + 16*qb
        for r in range(12): a.op(f"v_mul_f32 v{o+r}, v{o+r}, v{10+qb}")
        for k in range(6): a.op(f"v_cvt_pk_bf16_f32 v{o+k}, v{o+2*k}, v{o+2*k+1}")
        a.add(vm(f"buffer_store_dwordx4 {vr(o,4)}, v4, s[{SRD_WS}:{SRD_WS+3}], s{S_A} offen offset:{512*qb}{sc}", "st"))
        a.op("s_mov_b32 exec_hi, 0")
        a.add(vm(f"buffer_store_dwordx2 {vr(o+4,2)}, v3, s[{SRD_WS}:{SRD_WS+3}], s{S_B} offen offset:{512*qb}{sc}", "st"))
        a.op("s_mov_b64 exec, -1")

def attn_phase(a, sc=""):
    attn_setup_and_loads(a, sc)
    attn_compute(a, sc)
    a.op("s_waitcnt vmcnt(0) lgkmcnt(0)")
```

```python
from asmlib import *

OFF_NEGM = 0
OFF_R    = 8192
OFF_CS   = 16384
OFF_QK   = 1 << 20
OFF_V    = 8 << 20
OFF_ACT  = 12 << 20
WS_BYTES = 24 << 20
CHUNK = 2048 * 16

S_X, S_WQKV, S_WO, S_BX, S_WG, S_WU, S_WD, S_OUT = 4, 6, 8, 10, 12, 14, 16, 18
S_DBG, S_WS = 20, 22
SRD_X, SRD_WQKV, SRD_WG, SRD_WU, SRD_WS, SRD_WO, SRD_WD, SRD_OUT, SRD_DBG = 24, 28, 32, 36, 40, 44, 48, 52, 56
SRD_TMP = 60
S_WAVE = 64
S_T0 = 66

def srd(a, dst, ptr, nbytes):
    a.op(f"s_mov_b32 s{dst}, s{ptr}")
    a.op(f"s_and_b32 s{dst+1}, s{ptr+1}, 0xffff")
    a.op(f"s_mov_b32 s{dst+2}, {nbytes}")
    a.op(f"s_mov_b32 s{dst+3}, 0x20000")

def prologue(a, name, endlabel, codeend, nwg=256, pf_loads=1):
    a.raw(f".globl {name}\n.p2align 8\n.type {name},@function\n{name}:")
    a.op(f"s_cmp_ge_u32 s2, {nwg}")
    a.op(f"s_cbranch_scc1 {endlabel}")
    a.op("s_load_dwordx16 s[4:19], s[0:1], 0")
    a.op("s_load_dwordx4 s[20:23], s[0:1], 64")
    a.op(f"s_getpc_b64 s[{SRD_TMP}:{SRD_TMP+1}]")
    a.label(f"{name}_pc")
    a.op(f"s_mov_b32 s{SRD_TMP+2}, {codeend}-{name}_pc")
    a.op(f"s_mov_b32 s{SRD_TMP+3}, 0x20000")
    a.op("v_lshlrev_b32 v1, 7, v0")
    for i in range(pf_loads):
        if i:
            a.op("v_add_u32 v1, 0x8000, v1")
        a.add(vm(f"buffer_load_dword v255, v1, s[{SRD_TMP}:{SRD_TMP+3}], 0 offen", "pf"))
    a.op("v_lshrrev_b32 v1, 6, v0")
    a.op("v_and_b32 v0, 63, v0")
    a.op(f"v_readfirstlane_b32 s{S_WAVE}, v1")
    a.op("s_waitcnt lgkmcnt(0)")

def descriptor(name, vgpr=512, sgpr=102, accum=256):
    return f""".p2align 6
.amdhsa_kernel {name}
  .amdhsa_next_free_vgpr {vgpr}
  .amdhsa_next_free_sgpr {sgpr}
  .amdhsa_accum_offset {accum}
  .amdhsa_group_segment_fixed_size 0
  .amdhsa_kernarg_size 80
  .amdhsa_user_sgpr_count 2
  .amdhsa_user_sgpr_kernarg_segment_ptr 1
  .amdhsa_system_sgpr_workgroup_id_x 1
.end_amdhsa_kernel"""
```

```python
from common import *

V_XV, V_WV, V_GV, V_UV, V_G2, V_U2 = 1, 2, 3, 4, 5, 6
V_XA = 7
V_WA = 11
V_BA = 13
V_B2A = 15
V_ST = 16
V_SV = 17
V_R = 18
V_R2 = 20
V_XE = 22
V_WE = 26
V_CSV = 30
V_CSG = 31
V_TMP = 32
V_WF = 40
ACC0, ACC1 = 64, 128
V_XF = 192

S_M, S_N, S_MG, S_NG = 66, 67, 68, 69
S_XB, S_WB, S_GB, S_G2B = 70, 71, 72, 73
S_LW = 74
S_A, S_B = 75, 76
S_STQ, S_STH = 77, 78
S_CSB = 79
S_RB = 80
NSLOT = 10
SLOT = 16384
LOG2E = 1.4426950408889634
import struct
def f2u(f): return struct.unpack("<I", struct.pack("<f", f))[0]

def xfrag(t, mb):
    if t < 32: return ar((t*2 + mb)*4, 4)
    return vr(V_XF + ((t-32)*2 + mb)*4, 4)

def setup(a):
    a.op(f"s_and_b32 s{S_A}, s2, 1")
    a.op(f"s_lshl_b32 s{S_A}, s{S_A}, 3")
    a.op(f"s_bfe_u32 s{S_B}, s2, 0x30003")
    a.op(f"s_add_u32 s{S_M}, s{S_A}, s{S_B}")
    a.op(f"s_bfe_u32 s{S_A}, s2, 0x20001")
    a.op(f"s_lshl_b32 s{S_A}, s{S_A}, 2")
    a.op(f"s_lshr_b32 s{S_B}, s2, 6")
    a.op(f"s_add_u32 s{S_N}, s{S_A}, s{S_B}")
    a.op(f"s_and_b32 s{S_MG}, s{S_WAVE}, 1")
    a.op(f"s_lshr_b32 s{S_NG}, s{S_WAVE}, 1")
    a.op(f"s_lshl_b32 s{S_LW}, s{S_WAVE}, 10")
    a.op("v_lshrrev_b32 v32, 3, v0")
    a.op("v_and_b32 v33, 7, v0")
    a.op("v_lshrrev_b32 v34, 4, v0")
    a.op(f"s_lshl_b32 s{S_A}, s{S_MG}, 2")
    a.op(f"v_add_u32 v35, s{S_A}, v34")
    a.op("v_xor_b32 v35, v35, v33")
    a.op(f"v_mul_u32_u24 v{V_XV}, 1280, v32")
    a.op(f"v_lshl_add_u32 v{V_XV}, v35, 4, v{V_XV}")
    a.op(f"s_lshl_b32 s{S_A}, s{S_M}, 7")
    a.op(f"s_lshl_b32 s{S_B}, s{S_WAVE}, 3")
    a.op(f"s_add_u32 s{S_A}, s{S_A}, s{S_B}")
    a.op(f"s_mul_i32 s{S_XB}, s{S_A}, 1280")
    a.op("v_and_b32 v35, 15, v0")
    a.op("v_lshlrev_b32 v36, 2, v34")
    a.op("v_xor_b32 v35, v35, v36")
    a.op(f"v_mul_u32_u24 v{V_WV}, 3840, v34")
    a.op(f"v_lshl_add_u32 v{V_WV}, v35, 4, v{V_WV}")
    a.op(f"s_min_u32 s{S_A}, s{S_N}, 14")
    a.op(f"s_lshl_b32 s{S_A}, s{S_A}, 8")
    a.op(f"s_mul_i32 s{S_WB}, s{S_WAVE}, {4*3840}")
    a.op(f"s_add_u32 s{S_WB}, s{S_WB}, s{S_A}")

def setup2(a):
    L = []
    o = L.append
    o("v_lshrrev_b32 v32, 3, v0")
    o("v_and_b32 v33, 7, v0")
    o("v_lshrrev_b32 v34, 4, v0")
    o("v_and_b32 v35, 1, v34")
    o("v_lshlrev_b32 v35, 1, v35")
    o("v_xor_b32 v35, v35, v33")
    o(f"v_mul_u32_u24 v{V_GV}, 3072, v32")
    o(f"v_lshl_add_u32 v{V_GV}, v35, 4, v{V_GV}")
    o(f"v_xor_b32 v{V_UV}, 64, v{V_GV}")
    o(f"s_mul_i32 s{S_A}, s{S_N}, 192")
    o(f"s_mul_i32 s{S_GB}, s{S_WAVE}, {8*3072}")
    o(f"s_add_u32 s{S_GB}, s{S_GB}, s{S_A}")
    o("v_lshrrev_b32 v35, 2, v0")
    o("v_and_b32 v36, 3, v0")
    o(f"v_mul_u32_u24 v{V_G2}, 3072, v35")
    o(f"v_lshl_add_u32 v{V_G2}, v36, 4, v{V_G2}")
    o(f"v_xor_b32 v{V_U2}, 32, v{V_G2}")
    o(f"s_mul_i32 s{S_G2B}, s{S_WAVE}, {16*3072}")
    o(f"s_add_u32 s{S_G2B}, s{S_G2B}, s{S_A}")
    o(f"s_add_u32 s{S_G2B}, s{S_G2B}, 128")
    o("v_and_b32 v32, 31, v0")
    o("v_lshrrev_b32 v33, 5, v0")
    o("v_bfe_u32 v35, v0, 1, 3")
    o("v_xor_b32 v35, v35, v33")
    o(f"s_lshl_b32 s{S_A}, s{S_MG}, 13")
    o("v_lshlrev_b32 v36, 7, v32")
    o(f"v_add_u32 v36, s{S_A}, v36")
    for ks in range(4):
        o(f"v_xor_b32 v37, {2*ks}, v35")
        o(f"v_lshl_add_u32 v{V_XA+ks}, v37, 4, v36")
    o("v_bfe_u32 v35, v0, 2, 2")
    o("v_and_b32 v36, 1, v0")
    o("v_bfe_u32 v37, v0, 1, 1")
    o("v_lshl_or_b32 v36, v36, 1, v37")
    o("v_bfe_u32 v37, v0, 4, 1")
    o("v_lshl_add_u32 v38, v33, 3, v35")
    o(f"s_lshl_b32 s{S_A}, s{S_NG}, 1")
    o("v_lshlrev_b32 v39, 8, v38")
    o("v_lshl_add_u32 v39, v37, 5, v39")
    o("v_lshl_add_u32 v39, v36, 3, v39")
    o(f"v_xor_b32 v34, s{S_A}, v35")
    o(f"v_lshl_add_u32 v{V_WA}, v34, 6, v39")
    o(f"v_xor_b32 v{V_WA+1}, 64, v{V_WA}")
    o("v_lshlrev_b32 v39, 7, v38")
    o("v_lshl_add_u32 v39, v37, 13, v39")
    o("v_lshl_add_u32 v39, v36, 3, v39")
    o("v_lshrrev_b32 v34, 1, v35")
    o("v_lshl_or_b32 v34, v37, 1, v34")
    o(f"v_xor_b32 v34, s{S_A}, v34")
    o(f"v_lshl_add_u32 v{V_BA}, v34, 5, v39")
    o(f"v_xor_b32 v{V_BA+1}, 32, v{V_BA}")
    o("v_lshlrev_b32 v39, 6, v38")
    o("v_lshl_add_u32 v39, v37, 13, v39")
    o("v_lshl_add_u32 v39, v36, 3, v39")
    o(f"v_xor_b32 v34, s{S_NG}, v37")
    o(f"v_lshl_add_u32 v{V_B2A}, v34, 5, v39")
    o(f"v_lshlrev_b32 v{V_ST}, 15, v33")
    o(f"v_lshl_add_u32 v{V_ST}, v32, 4, v{V_ST}")
    o("v_bfe_u32 v34, v0, 2, 1")
    o("v_bfe_u32 v35, v0, 3, 1")
    o("v_lshl_or_b32 v34, v34, 1, v35")
    o("v_and_b32 v35, 3, v0")
    o("v_lshl_add_u32 v34, v34, 2, v35")
    o("v_lshl_add_u32 v35, v37, 4, v34")
    o(f"v_lshlrev_b32 v{V_CSV}, 2, v35")
    o(f"v_mul_u32_u24 v{V_SV}, 10240, v33")
    o(f"v_lshl_add_u32 v{V_SV}, v35, 4, v{V_SV}")
    o(f"v_mul_u32_u24 v{V_CSG}, {1536*4}, v37")
    o(f"v_lshl_add_u32 v{V_CSG}, v34, 2, v{V_CSG}")
    o(f"s_lshl_b32 s{S_RB}, s{S_M}, 7")
    o(f"s_lshl_b32 s{S_A}, s{S_MG}, 6")
    o(f"s_add_u32 s{S_RB}, s{S_RB}, s{S_A}")
    return L

def fill_ops(f):
    slot = (f % NSLOT) * SLOT
    G = []
    for q in range(4):
        if f < 20 and f % 2 == 0:
            s = f // 2
            so = q*32*1280 + 128*s; lds = slot + q*4096
            G.append([f"s_add_u32 s{S_A}, s{S_XB}, {so}", f"s_add_u32 m0, s{S_LW}, {lds}",
                      vm(f"buffer_load_dwordx4 v{V_XV}, s[{SRD_X}:{SRD_X+3}], s{S_A} offen lds", ("fill", f))])
        elif f < 20:
            s = f // 2
            so = (64*s + 16*q)*3840; lds = slot + q*4096
            G.append([f"s_add_u32 s{S_A}, s{S_WB}, {so}", f"s_add_u32 m0, s{S_LW}, {lds}",
                      vm(f"buffer_load_dwordx4 v{V_WV}, s[{SRD_WQKV}:{SRD_WQKV+3}], s{S_A} offen lds", ("fill", f))])
        elif f < 30:
            s = f - 20; mat = q >> 1; hf = q & 1
            so = (64*s + 32*hf)*3072; lds = slot + mat*8192 + hf*4096
            v = V_UV if mat else V_GV; sd = SRD_WU if mat else SRD_WG
            G.append([f"s_add_u32 s{S_A}, s{S_GB}, {so}", f"s_add_u32 m0, s{S_LW}, {lds}",
                      vm(f"buffer_load_dwordx4 v{v}, s[{sd}:{sd+3}], s{S_A} offen lds", ("fill", f))])
        else:
            s = f - 30; mat = q >> 1; hf = q & 1
            so = (128*s + 64*hf)*3072; lds = slot + mat*8192 + hf*4096
            v = V_U2 if mat else V_G2; sd = SRD_WU if mat else SRD_WG
            G.append([f"s_add_u32 s{S_A}, s{S_G2B}, {so}", f"s_add_u32 m0, s{S_LW}, {lds}",
                      vm(f"buffer_load_dwordx4 v{v}, s[{sd}:{sd+3}], s{S_A} offen lds", ("fill", f))])
    return G

def epoch_fills(e):
    return [2*e, 2*e+1] if e < 10 else [10 + e]

def cs_load_ops(kind, j, tmp, sc=""):
    L = []
    if kind == "A":
        L.append(f"s_min_u32 s{S_CSB}, s{S_N}, 14")
        L.append(f"s_lshl_b32 s{S_CSB}, s{S_CSB}, 9")
        L.append(f"s_lshl_b32 s{S_B}, s{S_NG}, 8")
        L.append(f"s_add_u32 s{S_CSB}, s{S_CSB}, s{S_B}")
        L.append(f"s_add_u32 s{S_CSB}, s{S_CSB}, {OFF_CS + 128*j}")
        v = V_CSV
    else:
        L.append(f"s_mul_i32 s{S_CSB}, s{S_N}, {96*4}")
        if kind == "B1":
            L.append(f"s_lshl_b32 s{S_B}, s{S_NG}, 7")
            L.append(f"s_add_u32 s{S_CSB}, s{S_CSB}, s{S_B}")
            L.append(f"s_add_u32 s{S_CSB}, s{S_CSB}, {OFF_CS + 1920*4 + 64*j}")
        else:
            L.append(f"s_lshl_b32 s{S_B}, s{S_NG}, 6")
            L.append(f"s_add_u32 s{S_CSB}, s{S_CSB}, s{S_B}")
            L.append(f"s_add_u32 s{S_CSB}, s{S_CSB}, {OFF_CS + 1920*4 + 256}")
        v = V_CSG
    for p in range(5):
        L.append(vm(f"buffer_load_dword v{tmp+p}, v{v}, s[{SRD_WS}:{SRD_WS+3}], s{S_CSB} offen{sc}", ("cs", kind, j)))
        if p < 4: L.append(f"s_add_u32 s{S_CSB}, s{S_CSB}, {4992*4}")
    return L

def cs_finish_ops(kind, j, tmp):
    w = V_WE + 2*j
    return [wait_vm(("cs", kind, j)),
            f"v_add_f32 v{tmp}, v{tmp}, v{tmp+1}", f"v_add_f32 v{tmp+2}, v{tmp+2}, v{tmp+3}",
            f"v_add_f32 v{tmp}, v{tmp}, v{tmp+4}", f"v_add_f32 v{tmp}, v{tmp}, v{tmp+2}",
            f"v_cvt_pk_bf16_f32 v{tmp+1}, v{tmp}, v{tmp}",
            f"v_and_b32 v{tmp+1}, 0xffff0000, v{tmp+1}",
            f"v_sub_f32 v{tmp+1}, v{tmp}, v{tmp+1}",
            f"v_cvt_pk_bf16_f32 v{w}, v{tmp}, v{tmp+1}",
            f"v_and_b32 v{tmp+2}, 0xffff0000, v{w}",
            f"v_sub_f32 v{tmp+1}, v{tmp+1}, v{tmp+2}",
            f"v_cvt_pk_bf16_f32 v{w+1}, v{tmp+1}, 0"]

def rowstat_load_ops(sc=""):
    L = [f"v_and_b32 v{V_TMP+6}, 31, v0", f"v_lshlrev_b32 v{V_TMP+6}, 2, v{V_TMP+6}",
         f"s_lshl_b32 s{S_B}, s{S_RB}, 2"]
    for mb in range(2):
        L.append(vm(f"buffer_load_dword v{V_XE+2*mb}, v{V_TMP+6}, s[{SRD_WS}:{SRD_WS+3}], s{S_B} offen offset:{128*mb}{sc}", "rs"))
    L.append(f"s_add_u32 s{S_B}, s{S_B}, {OFF_R}")
    for mb in range(2):
        L.append(vm(f"buffer_load_dword v{V_R+mb}, v{V_TMP+6}, s[{SRD_WS}:{SRD_WS+3}], s{S_B} offen offset:{128*mb}{sc}", "rs"))
    return L

def rowstat_finish_ops():
    qs = f2u(20**-0.5 * LOG2E)
    L = [wait_vm("rs"), "v_cmp_gt_u32 vcc, 32, v0",
         f"s_cmp_lt_u32 s{S_N}, 5", f"s_cselect_b32 s{S_B}, {qs}, 1.0"]
    for mb in range(2):
        L.append(f"v_cndmask_b32 v{V_XE+2*mb}, 0, v{V_XE+2*mb}, vcc")
        L.append(f"v_and_b32 v{V_XE+2*mb+1}, 0xffff, v{V_XE+2*mb}")
        L.append(f"v_mul_f32 v{V_R2+mb}, s{S_B}, v{V_R+mb}")
    return L

def epi_T_ops(acc, j, mb, sc=""):
    L = []
    for r in range(16):
        L.append(f"v_mul_f32 v{acc+r}, v{acc+r}, v{V_R2+mb}")
    for ap in range(2):
        b = acc + 8*ap
        for k in range(4):
            L.append(f"v_cvt_pk_bf16_f32 v{b+k}, v{b+2*k}, v{b+2*k+1}")
        L.append(f"s_add_u32 s{S_B}, s{S_STQ}, {(4*j + 2*ap)*CHUNK}")
        L.append(vm(f"buffer_store_dwordx4 v[{b}:{b+3}], v{V_ST}, s[{SRD_WS}:{SRD_WS+3}], s{S_B} offen offset:{512*mb}{sc}", "st"))
    return L

V_R16 = [1, 2, 7, 8, 9, 10, 11, 12, 32, 33, 34, 35, 36, 37, 38, 39]
def epi_V_ops(sc=""):
    Q = [8, 32, 36]
    L = []
    L.append(f"v_lshrrev_b32 v1, 5, v0")
    L.append(f"v_lshlrev_b32 v1, 4, v1")
    L.append(f"s_lshl_b32 s{S_CSB}, s{S_RB}, 2")
    L.append(f"s_add_u32 s{S_CSB}, s{S_CSB}, {OFF_R}")
    items = [(mb, a_) for mb in range(2) for a_ in range(4)]
    def ld(i):
        mb, a_ = items[i]
        return vm(f"buffer_load_dwordx4 v[{Q[i%3]}:{Q[i%3]+3}], v1, s[{SRD_WS}:{SRD_WS+3}], s{S_CSB} offen offset:{128*mb + 32*a_}{sc}", ("r16", i))
    L += [ld(0), ld(1), ld(2)]
    for i, (mb, a_) in enumerate(items):
        q = Q[i % 3]
        L.append(wait_vm(("r16", i)))
        for j in range(2):
            acc = ACC0 + (j*2 + mb)*16
            for b in range(4):
                L.append(f"v_mul_f32 v{acc+4*a_+b}, v{acc+4*a_+b}, v{q+b}")
        if i + 3 < len(items): L.append(ld(i+3))
        if a_ % 2 == 1:
            t = a_ // 2
            for j in range(2):
                b0 = ACC0 + (j*2 + mb)*16 + 8*t
                for k in range(4):
                    L.append(f"v_cvt_pk_bf16_f32 v{b0+k}, v{b0+2*k}, v{b0+2*k+1}")
                L.append(f"s_add_u32 s{S_B}, s{S_STQ}, {(mb*4 + t*2)*10240}")
                L.append(vm(f"buffer_store_dwordx4 v[{b0}:{b0+3}], v{V_SV}, s[{SRD_WS}:{SRD_WS+3}], s{S_B} offen offset:{512*j}{sc}", "st"))
    return L

def epi_glu_ops(acc, chunk_off, mb, sc=""):
    L = []
    for grp in range(2):
        rs = range(4*grp, 4*grp+4)
        for r in rs: L.append(f"v_mul_f32 v{acc+r}, v{acc+r}, v{V_R2+mb}")
        for r in rs: L.append(f"v_exp_f32 v{acc+r}, v{acc+r}")
        for r in rs: L.append(f"v_mul_f32 v{acc+8+r}, v{acc+8+r}, v{V_R+mb}")
        for r in rs: L.append(f"v_add_f32 v{acc+r}, 1.0, v{acc+r}")
        for r in rs: L.append(f"v_rcp_f32 v{acc+r}, v{acc+r}")
        L.append("s_nop 0")
        for r in rs: L.append(f"v_mul_f32 v{acc+r}, v{acc+r}, v{acc+8+r}")
    for k in range(4):
        L.append(f"v_cvt_pk_bf16_f32 v{acc+k}, v{acc+2*k}, v{acc+2*k+1}")
    L.append(f"s_add_u32 s{S_B}, s{S_STH}, {chunk_off*CHUNK}")
    L.append(vm(f"buffer_store_dwordx4 v[{acc}:{acc+3}], v{V_ST}, s[{SRD_WS}:{SRD_WS+3}], s{S_B} offen offset:{512*mb}{sc}", "st"))
    return L

def gemm1_body(a, variant, sc="", hooks=None):
    hooks = hooks or {}
    steps = []
    for t in range(40): steps.append(dict(p="A", t=t, e=t//4, ks=t % 4, nb=2))
    for t in range(40): steps.append(dict(p="B1", t=t, e=10 + t//4, ks=t % 4, nb=2))
    for t in range(40): steps.append(dict(p="B2", t=t, e=20 + t//8, ks=t % 8, nb=1))
    frags = []
    for si, s in enumerate(steps):
        for j in range(s["nb"]): frags.append((si, j))
    fr_index = {f: k for k, f in enumerate(frags)}
    cur_base = {}
    def rebase(reg, slot_off):
        cur = cur_base.get(reg, 0)
        if cur == slot_off: return []
        cur_base[reg] = slot_off
        return [f"v_add_u32 v{reg}, {hex((slot_off - cur) & 0xffffffff)}, v{reg}"]
    def frag_read(k):
        si, j = frags[k]; s = steps[si]
        q = V_WF + (k % 6)*4
        f = epoch_fills(s["e"])[-1]
        slot = (f % NSLOT)*SLOT
        if s["p"] == "A":   reg, o1, o2 = V_WA + j, s["ks"]*4096, 1024
        elif s["p"] == "B1": reg, o1, o2 = V_BA + j, s["ks"]*2048, 512
        else:               reg, o1, o2 = V_B2A, s["ks"]*1024, 256
        return rebase(reg, slot) + [ds(f"ds_read_b64_tr_b16 v[{q}:{q+1}], v{reg} offset:{o1}", None),
                                    ds(f"ds_read_b64_tr_b16 v[{q+2}:{q+3}], v{reg} offset:{o1+o2}", ("wf", k))]
    def x_reads(e):
        slot = ((2*e) % NSLOT)*SLOT
        L = []
        for ks in range(4):
            g = rebase(V_XA + ks, slot)
            for mb in range(2):
                g = g + [ds(f"ds_read_b128 {xfrag(4*e+ks, mb)}, v{V_XA+ks} offset:{mb*4096}", ("xf", 4*e+ks, mb))]
            L.append(g)
        return L
    bg = []
    def push(groups):
        bg.extend(groups)
    def chunked(L, n):
        return [L[i:i+n] for i in range(0, len(L), n)]
    avail_epoch = 0
    next_frag = 0
    freed = set()
    a.add(wait_vm(("fill", 1)))
    a.op("s_barrier")
    for g in x_reads(0): a.add(g)
    while next_frag < 6:
        a.add(frag_read(next_frag)); next_frag += 1
    done_frag = -1
    nfill = 10
    def accreg(p, j, mb):
        if p == "A": return ACC0 + (j*2 + mb)*16
        if p == "B1": return ACC1 + (j*2 + mb)*16
        return ACC0 + mb*16
    BUDGET = 4
    for si, s in enumerate(steps):
        p, t, e, ks = s["p"], s["t"], s["e"], s["ks"]
        barrier_here = (ks == (1 if p != "B2" else 2)) and e + 1 < 25
        if p == "A" and t == 0 and "early" in hooks: push(hooks["early"])
        if p == "A" and t == 24:
            if "stats_wait" in hooks: push(hooks["stats_wait"])
            push(chunked(rowstat_load_ops(sc), 3))
            push(chunked(cs_load_ops("A", 0, V_TMP, sc), 3))
        if p == "A" and t == 30:
            rf = rowstat_finish_ops(); push([rf[:4]]); push(chunked(rf[4:], 3)); push(chunked(cs_finish_ops("A", 0, V_TMP), 3))
            push(chunked(cs_load_ops("A", 1, V_TMP, sc), 3))
        if p == "A" and t == 36:
            push(chunked(cs_finish_ops("A", 1, V_TMP), 3))
        if p == "B1" and t == 1:
            if variant == "T":
                pre = [f"s_lshl_b32 s{S_STQ}, s{S_N}, 4", f"s_lshl_b32 s{S_B}, s{S_NG}, 3", f"s_add_u32 s{S_STQ}, s{S_STQ}, s{S_B}",
                       f"s_lshl_b32 s{S_STQ}, s{S_STQ}, 15", f"s_lshl_b32 s{S_B}, s{S_RB}, 4", f"s_add_u32 s{S_STQ}, s{S_STQ}, s{S_B}",
                       f"s_add_u32 s{S_STQ}, s{S_STQ}, {OFF_QK}"]
                push([pre])
                for j in range(2):
                    for mb in range(2):
                        push(chunked(epi_T_ops(accreg("A", j, mb), j, mb, sc), 3))
            else:
                pre = [f"s_lshr_b32 s{S_STQ}, s{S_RB}, 5", f"s_mul_i32 s{S_STQ}, s{S_STQ}, {4*10240}",
                       f"s_sub_u32 s{S_B}, s{S_N}, 10", f"s_lshl_b32 s{S_B}, s{S_B}, 11", f"s_add_u32 s{S_STQ}, s{S_STQ}, s{S_B}",
                       f"s_lshl_b32 s{S_B}, s{S_NG}, 10", f"s_add_u32 s{S_STQ}, s{S_STQ}, s{S_B}",
                       f"s_add_u32 s{S_STQ}, s{S_STQ}, {OFF_V}",
                       f"s_cmp_eq_u32 s{S_N}, 15", f"s_cselect_b32 s{S_STQ}, 0x7f000000, s{S_STQ}"]
                push([pre])
                push(chunked(epi_V_ops(sc), 3))
            if "after_epiA" in hooks: push(hooks["after_epiA"])
            nl = f2u(-LOG2E)
            push([[f"v_mul_f32 v{V_R2}, {hex(nl)}, v{V_R}", f"v_mul_f32 v{V_R2+1}, {hex(nl)}, v{V_R+1}"]])
            push([[f"s_mul_i32 s{S_STH}, s{S_N}, 12", f"s_lshl_b32 s{S_STH}, s{S_STH}, 15", f"s_lshl_b32 s{S_B}, s{S_RB}, 4",
                   f"s_add_u32 s{S_STH}, s{S_STH}, s{S_B}", f"s_add_u32 s{S_STH}, s{S_STH}, {OFF_ACT}"]])
            push(chunked(cs_load_ops("B1", 0, V_TMP, sc), 3))
        if p == "B1" and t == 30:
            push(chunked(cs_finish_ops("B1", 0, V_TMP), 3))
            push(chunked(cs_load_ops("B1", 1, V_TMP, sc), 3))
        if p == "B1" and t == 36:
            push(chunked(cs_finish_ops("B1", 1, V_TMP), 3))
        if p == "B2" and t == 2:
            push(chunked(cs_load_ops("B2", 0, V_TMP, sc), 3))
            push([[f"s_lshl_b32 s{S_B}, s{S_NG}, 17", f"s_add_u32 s{S_STH}, s{S_STH}, s{S_B}"]])
            for j in range(2):
                for mb in range(2):
                    push(chunked(epi_glu_ops(accreg("B1", j, mb), 2*j, mb, sc), 3))
            push([[f"s_lshl_b32 s{S_B}, s{S_NG}, 16", f"s_sub_u32 s{S_STH}, s{S_STH}, s{S_B}"]])
            push(chunked(cs_finish_ops("B2", 0, V_TMP), 3))
        mi = 0
        for j in range(s["nb"]):
            k = fr_index[(si, j)]
            q = V_WF + (k % 6)*4
            for mb in range(2):
                a.add(wait_ds(("wf", k)))
                if p == "A": a.add(wait_ds(("xf", t, mb)))
                acc = accreg(p, j, mb)
                c = "0" if t == 0 else vr(acc, 16)
                if p == "A" and variant == "V":
                    a.op(f"v_mfma_f32_32x32x16_bf16 {vr(acc,16)}, {xfrag(t, mb)}, {vr(q,4)}, {c}")
                else:
                    a.op(f"v_mfma_f32_32x32x16_bf16 {vr(acc,16)}, {vr(q,4)}, {xfrag(t, mb)}, {c}")
                used = 0
                if barrier_here and mi == 0:
                    for f in epoch_fills(e+1): a.add(wait_vm(("fill", f)))
                    a.op("s_barrier")
                    avail_epoch = e + 1
                    front = []
                    if e + 1 < 10: front += x_reads(e+1)
                    if e >= 1:
                        for f in epoch_fills(e-1):
                            if f + NSLOT < 35: front += fill_ops(f + NSLOT)
                            elif "slot_free" in hooks: front += hooks["slot_free"](f)
                    bg[0:0] = front
                if mb == 1: done_frag = k
                while next_frag < len(frags) and next_frag - 6 <= done_frag and steps[frags[next_frag][0]]["e"] <= avail_epoch and used < BUDGET:
                    g = frag_read(next_frag); a.add(g); used += len(g); next_frag += 1
                while bg and used < BUDGET:
                    g = bg.pop(0); a.add(g); used += len([x for x in g if not (isinstance(x, Ins) and x.kind.startswith("wait"))])
                mi += 1
        if t == 39:
            while bg:
                a.add(bg.pop(0))
            a.op("s_nop 1")
            for j in range(s["nb"]):
                for mb in range(2):
                    acc = accreg(p, j, mb)
                    if p == "A" and variant == "V":
                        a.op(f"v_mfma_f32_32x32x8_bf16 {vr(acc,16)}, {vr(V_XE+2*mb,2)}, {vr(V_WE+2*j,2)}, {vr(acc,16)}")
                    else:
                        a.op(f"v_mfma_f32_32x32x8_bf16 {vr(acc,16)}, {vr(V_WE+2*j,2)}, {vr(V_XE+2*mb,2)}, {vr(acc,16)}")
    a.op("s_nop 15")
    for mb in range(2):
        a.add(epi_glu_ops(accreg("B2", 0, mb), 8, mb, sc))

def gemm1_phase(a, sc="", hooks=None, tagp="g1"):
    setup(a)
    for f in range(0, 4):
        for g in fill_ops(f): a.add(g)
    a.add(setup2(a))
    for f in range(4, 10):
        for g in fill_ops(f): a.add(g)
    head = list(a.L)
    a.op(f"s_cmp_ge_u32 s{S_N}, 10")
    a.op(f"s_cbranch_scc1 L_{tagp}_V")
    gemm1_body(a, "T", sc, hooks)
    a.op("s_waitcnt vmcnt(0) lgkmcnt(0)")
    a.op(f"s_branch L_{tagp}_join")
    b = Asm(); b.L = [i for i in head if i.kind in ("vm", "ds", "reset") or (i.kind == "op" and i.text.startswith("s_waitcnt"))]
    nhead = len(resolve(b.L).split("\n"))
    gemm1_body(b, "V", sc, hooks)
    b.op("s_waitcnt vmcnt(0) lgkmcnt(0)")
    txt = resolve(b.L).split("\n")[nhead:]
    a.raw(".p2align 3")
    a.label(f"L_{tagp}_V")
    a.raw("\n".join(txt))
    a.label(f"L_{tagp}_join")
    a.add(reset_counters())
```

```python
from common import *

V_AV = 1
V_WV = 2
V_RA = 7
V_XO = 8
V_RED = 9
V_X = 10
V_WF = 24
V_ACC = 64
A_AF = 0
NAB = 6
NWB = 7
S_MT, S_NT, S_A, S_B, S_AB, S_WDB, S_WOB, S_LB = 66, 67, 68, 69, 70, 71, 72, 73
WSTEP = 5120

def g2_setup(a):
    a.op(f"s_and_b32 s{S_A}, s2, 7")
    a.op(f"s_lshl_b32 s{S_A}, s{S_A}, 2")
    a.op(f"s_bfe_u32 s{S_B}, s2, 0x20003")
    a.op(f"s_add_u32 s{S_MT}, s{S_A}, s{S_B}")
    a.op(f"s_lshr_b32 s{S_NT}, s2, 5")
    for i in range(5):
        a.op(f"v_add_u32 v20, {64*i}, v0")
        a.op(f"v_mul_u32_u24 v21, 6554, v20")
        a.op(f"v_lshrrev_b32 v21, 16, v21")
        a.op(f"v_mul_u32_u24 v22, 10, v21")
        a.op(f"v_sub_u32 v22, v20, v22")
        a.op(f"v_mul_u32_u24 v{V_WV+i}, 1280, v21")
        a.op(f"v_lshl_add_u32 v{V_WV+i}, v22, 4, v{V_WV+i}")
    a.op(f"s_mul_i32 s{S_A}, s{S_NT}, 160")
    a.op(f"s_mul_i32 s{S_WDB}, s{S_WAVE}, {12*32*1280}")
    a.op(f"s_add_u32 s{S_WDB}, s{S_WDB}, s{S_A}")
    a.op(f"s_mul_i32 s{S_WOB}, s{S_WAVE}, {5*32*1280}")
    a.op(f"s_add_u32 s{S_WOB}, s{S_WOB}, s{S_A}")
    a.op(f"s_mul_i32 s{S_LB}, s{S_WAVE}, {NWB*WSTEP}")

def g2_setup2(a):
    a.op("v_and_b32 v20, 15, v0")
    a.op("v_lshrrev_b32 v21, 4, v0")
    a.op(f"v_lshlrev_b32 v{V_AV}, 15, v21")
    a.op(f"v_lshl_add_u32 v{V_AV}, v20, 4, v{V_AV}")
    a.op(f"s_lshl_b32 s{S_AB}, s{S_MT}, 10")
    a.op(f"s_add_u32 s{S_AB}, s{S_AB}, {OFF_ACT}")
    a.op("v_bfe_u32 v22, v0, 2, 2")
    a.op("v_lshl_add_u32 v22, v21, 3, v22")
    a.op(f"v_mul_u32_u24 v{V_RA}, 160, v22")
    a.op("v_and_b32 v22, 3, v0")
    a.op(f"v_lshl_add_u32 v{V_RA}, v22, 3, v{V_RA}")
    a.op(f"v_add_u32 v{V_RA}, s{S_LB}, v{V_RA}")
    a.op(f"v_mul_u32_u24 v{V_XO}, 1280, v20")
    a.op(f"v_lshl_add_u32 v{V_XO}, v21, 3, v{V_XO}")
    a.op(f"v_lshlrev_b32 v{V_RED}, 4, v0")

def w_fill(k):
    G = []
    lds = (k % NWB)*WSTEP
    for i in range(5):
        if k < 12:
            so, base, sd = k*32*1280, S_WDB, SRD_WD
        else:
            so, base, sd = (k-12)*32*1280, S_WOB, SRD_WO
        g = []
        if i == 0: g.append(f"s_add_u32 s{S_A}, s{base}, {so}")
        g += [f"s_add_u32 m0, s{S_LB}, {lds + i*1024}",
              vm(f"buffer_load_dwordx4 v{V_WV+i}, s[{sd}:{sd+3}], s{S_A} offen lds", ("wfill", k))]
        G.append(g)
    return G

def a_load(k, sc=""):
    G = []
    for mb in range(4):
        g = []
        if mb == 0:
            if k < 12:
                g.append(f"s_mul_i32 s{S_B}, s{S_WAVE}, {48*CHUNK}")
                g.append(f"s_add_u32 s{S_B}, s{S_B}, {4*k*CHUNK}")
            else:
                g.append(f"s_mul_i32 s{S_B}, s{S_WAVE}, {20*CHUNK}")
                g.append(f"s_add_u32 s{S_B}, s{S_B}, {(192 + 4*(k-12))*CHUNK}")
            g.append(f"s_add_u32 s{S_B}, s{S_B}, s{S_AB}")
        r = A_AF + ((k % NAB)*4 + mb)*4
        g.append(vm(f"buffer_load_dwordx4 {ar(r,4)}, v{V_AV}, s[{SRD_WS}:{SRD_WS+3}], s{S_B} offen offset:{256*mb}{sc}", ("af", k)))
        G.append(g)
    return G

def w_reads(k):
    G = []
    lds = (k % NWB)*WSTEP
    for nb in range(5):
        q = V_WF + ((k % 2)*5 + nb)*4
        G.append([ds(f"ds_read_b64_tr_b16 v[{q}:{q+1}], v{V_RA} offset:{lds + 32*nb}", None),
                  ds(f"ds_read_b64_tr_b16 v[{q+2}:{q+3}], v{V_RA} offset:{lds + 32*nb + 640}", ("wr", k, nb))])
    return G

def gemm2_phase(a, sc="", hooks=None):
    hooks = hooks or {}
    g2_setup(a)
    for k in range(2):
        for g in w_fill(k): a.add(g)
    g2_setup2(a)
    NK = 17
    for k in range(2):
        for g in a_load(k, sc): a.add(g)
    for k in range(2, NWB-1):
        for g in w_fill(k): a.add(g)
        if k < NAB - 1:
            for g in a_load(k, sc): a.add(g)
    a.op(f"s_lshl_b32 s{S_A}, s{S_MT}, 2")
    a.op(f"s_add_u32 s{S_A}, s{S_A}, s{S_WAVE}")
    a.op(f"s_mul_i32 s{S_A}, s{S_A}, {16*1280}")
    a.op(f"s_mul_i32 s{S_B}, s{S_NT}, 160")
    a.op(f"s_add_u32 s74, s{S_A}, s{S_B}")
    for nb in range(5):
        a.add(vm(f"buffer_load_dwordx2 {vr(V_X+2*nb,2)}, v{V_XO}, s[{SRD_X}:{SRD_X+3}], s74 offen offset:{32*nb}", "xres"))
    a.add(wait_vm(("wfill", 0)))
    for g in w_reads(0): a.add(g)
    for k in range(NK):
        bg = []
        if k + 1 < NK:
            bg.append([wait_vm(("wfill", k+1))])
            bg += w_reads(k+1)
        if k - 1 + NWB < NK and k >= 1: bg += w_fill(k - 1 + NWB)
        if k == 0 and NWB - 1 < NK: bg += w_fill(NWB - 1)
        if k - 1 + NAB < NK and k >= 1: bg += a_load(k - 1 + NAB, sc)
        if k == 0: bg += a_load(NAB - 1, sc)
        a.add(wait_vm(("af", k)))
        n = 0
        for nb in range(5):
            q = V_WF + ((k % 2)*5 + nb)*4
            a.add(wait_ds(("wr", k, nb)))
            for mb in range(4):
                acc = V_ACC + (mb*5 + nb)*4
                c = "0" if k == 0 else vr(acc, 4)
                r = A_AF + ((k % NAB)*4 + mb)*4
                a.op(f"v_mfma_f32_16x16x32_bf16 {vr(acc,4)}, {vr(q,4)}, {ar(r,4)}, {c}")
                n += 1
                if bg: a.add(bg.pop(0))
        while bg: a.add(bg.pop(0))
    a.op("s_nop 7")
    a.op("s_waitcnt lgkmcnt(0)")
    a.op("s_barrier")
    for dd in range(1, 4):
        pass
    for w in range(4):
        a.op(f"s_cmp_lg_u32 s{S_WAVE}, {w}")
        a.op(f"s_cbranch_scc1 L_g2_w{w}")
        for dd in range(1, 4):
            d = (w + dd) & 3
            for nb in range(5):
                acc = V_ACC + (d*5 + nb)*4
                a.op(f"ds_write_b128 v{V_RED}, {vr(acc,4)} offset:{((d*3 + (3-dd))*5 + nb)*1024}")
        for r in range(20):
            a.op(f"v_mov_b32 v{24+r}, v{V_ACC + w*20 + r}")
        a.label(f"L_g2_w{w}")
    a.op(f"s_mul_i32 s{S_A}, s{S_WAVE}, {15*1024}")
    a.op(f"v_add_u32 v{V_RED}, s{S_A}, v{V_RED}")
    a.op("s_waitcnt lgkmcnt(0)")
    a.op("s_barrier")
    for s in range(3):
        for nb in range(5):
            a.add(ds(f"ds_read_b128 {vr(64 + (s*5+nb)*4, 4)}, v{V_RED} offset:{(s*5+nb)*1024}", ("red", s, nb)))
    a.add(wait_vm("xres"))
    for nb in range(5):
        a.op(f"v_lshlrev_b32 v44, 16, v{V_X+2*nb}")
        a.op(f"v_and_b32 v45, 0xffff0000, v{V_X+2*nb}")
        a.op(f"v_lshlrev_b32 v46, 16, v{V_X+2*nb+1}")
        a.op(f"v_and_b32 v47, 0xffff0000, v{V_X+2*nb+1}")
        for r in range(4): a.op(f"v_add_f32 v{24+4*nb+r}, v{24+4*nb+r}, v{44+r}")
    for s in range(3):
        for nb in range(5):
            a.add(wait_ds(("red", s, nb)))
            for r in range(4):
                a.op(f"v_add_f32 v{24+4*nb+r}, v{24+4*nb+r}, v{64+(s*5+nb)*4+r}")
    for nb in range(5):
        b = 24 + 4*nb
        a.op(f"v_cvt_pk_bf16_f32 v{b}, v{b}, v{b+1}")
        a.op(f"v_cvt_pk_bf16_f32 v{b+1}, v{b+2}, v{b+3}")
        a.add(vm(f"buffer_store_dwordx2 {vr(b,2)}, v{V_XO}, s[{SRD_OUT}:{SRD_OUT+3}], s74 offen offset:{32*nb}", "st"))
    a.op("s_waitcnt vmcnt(0) lgkmcnt(0)")
```

```python
from common import *

def dpp_allsum32(a, v, t):
    for mod in ("quad_perm:[1,0,3,2]", "quad_perm:[2,3,0,1]", "row_half_mirror", "row_mirror"):
        a.op("s_nop 1")
        a.op(f"v_add_f32_dpp v{v}, v{v}, v{v} {mod} row_mask:0xf bank_mask:0xf")
    a.op(f"v_mov_b32 v{t}, v{v}")
    a.op("s_nop 1")
    a.op(f"v_permlane16_swap_b32 v{v}, v{t}")
    a.op("s_nop 1")
    a.op(f"v_add_f32 v{v}, v{v}, v{t}")

def stats_phase(a, sc="", lds_base=0, tagp="st"):
    T = S_T0
    a.op("v_lshrrev_b32 v1, 5, v0")
    a.op("v_and_b32 v2, 31, v0")
    a.op("v_mul_u32_u24 v3, 1280, v1")
    a.op("v_lshl_add_u32 v3, v2, 3, v3")
    a.op(f"s_lshl_b32 s{T}, s2, 3")
    a.op(f"s_lshl_b32 s{T+1}, s{S_WAVE}, 1")
    a.op(f"s_add_u32 s{T}, s{T}, s{T+1}")
    a.op(f"s_mul_i32 s{T+1}, s{T}, 1280")
    for j in range(5):
        a.add(vm(f"buffer_load_dwordx2 v[{4+2*j}:{5+2*j}], v3, s[{SRD_X}:{SRD_X+3}], s{T+1} offen offset:{256*j}", tagp+"row"))
    a.op("s_cmp_ge_u32 s2, 195")
    a.op(f"s_cbranch_scc1 L_{tagp}_nocs1")
    a.op(f"s_mul_hi_u32 s{T+2}, s2, {(2**32 + 38)//39}")
    a.op(f"s_mul_i32 s{T+3}, s{T+2}, 39")
    a.op(f"s_sub_u32 s{T+3}, s2, s{T+3}")
    a.op(f"s_cmp_lt_u32 s{T+3}, 27")
    a.op(f"s_cselect_b32 s{SRD_TMP}, s{S_WG}, s{S_WU}")
    a.op(f"s_cselect_b32 s{SRD_TMP+1}, s{S_WG+1}, s{S_WU+1}")
    a.op(f"s_cselect_b32 s{T+4}, 15, 27")
    a.op(f"s_cmp_lt_u32 s{T+3}, 15")
    a.op(f"s_cselect_b32 s{SRD_TMP}, s{S_WQKV}, s{SRD_TMP}")
    a.op(f"s_cselect_b32 s{SRD_TMP+1}, s{S_WQKV+1}, s{SRD_TMP+1}")
    a.op(f"s_cselect_b32 s{T+4}, 0, s{T+4}")
    a.op(f"s_movk_i32 s{T+5}, 3072")
    a.op(f"s_cselect_b32 s{T+5}, 3840, s{T+5}")
    a.op(f"s_and_b32 s{SRD_TMP+1}, s{SRD_TMP+1}, 0xffff")
    a.op(f"s_mul_i32 s{SRD_TMP+2}, s{T+5}, 640")
    a.op(f"s_mov_b32 s{SRD_TMP+3}, 0x20000")
    a.op(f"s_sub_u32 s{T+4}, s{T+3}, s{T+4}")
    a.op(f"s_lshl_b32 s{T+4}, s{T+4}, 8")
    a.op(f"s_lshl_b32 s{T+6}, s{T+2}, 7")
    a.op(f"s_lshl_b32 s{T+7}, s{S_WAVE}, 2")
    a.op(f"s_add_u32 s{T+6}, s{T+6}, s{T+7}")
    a.op(f"s_mul_i32 s{T+6}, s{T+6}, s{T+5}")
    a.op(f"s_add_u32 s{T+6}, s{T+6}, s{T+4}")
    a.op(f"s_lshl_b32 s{T+7}, s{T+5}, 4")
    a.op("v_lshrrev_b32 v14, 4, v0")
    a.op("v_and_b32 v15, 15, v0")
    a.op(f"v_mul_u32_u24 v14, s{T+5}, v14")
    a.op("v_lshl_add_u32 v14, v15, 4, v14")
    for j in range(8):
        a.op(f"buffer_load_dwordx4 v[{16+4*j}:{19+4*j}], v14, s[{SRD_TMP}:{SRD_TMP+3}], s{T+6} offen")
        if j < 7: a.op(f"s_add_u32 s{T+6}, s{T+6}, s{T+7}")
    a.op("s_waitcnt vmcnt(8)")
    a.op(f"s_branch L_{tagp}_rows")
    a.label(f"L_{tagp}_nocs1")
    a.op("s_waitcnt vmcnt(0)")
    a.label(f"L_{tagp}_rows")
    for k in range(10):
        a.op(f"v_lshlrev_b32 v{48+k}, 16, v{4+k}")
        a.op(f"v_and_b32 v{4+k}, 0xffff0000, v{4+k}")
    vals = [48+k for k in range(10)] + [4+k for k in range(10)]
    a.op(f"v_add_f32 v58, v{vals[0]}, v{vals[1]}")
    a.op(f"v_add_f32 v59, v{vals[2]}, v{vals[3]}")
    for k in range(4, 20, 2):
        a.op(f"v_add_f32 v58, v58, v{vals[k]}")
        a.op(f"v_add_f32 v59, v59, v{vals[k+1]}")
    a.op("v_add_f32 v58, v58, v59")
    dpp_allsum32(a, 58, 59)
    a.op("v_mul_f32 v58, 0x3acccccd, v58")
    a.op("v_mov_b32 v60, 0")
    a.op("v_mov_b32 v61, 0")
    for k in range(0, 20, 2):
        a.op(f"v_sub_f32 v{vals[k]}, v{vals[k]}, v58")
        a.op(f"v_sub_f32 v{vals[k+1]}, v{vals[k+1]}, v58")
        a.op(f"v_fmac_f32 v60, v{vals[k]}, v{vals[k]}")
        a.op(f"v_fmac_f32 v61, v{vals[k+1]}, v{vals[k+1]}")
    a.op("v_add_f32 v60, v60, v61")
    dpp_allsum32(a, 60, 59)
    a.op("v_mul_f32 v60, 0x3acccccd, v60")
    a.op("v_cvt_pk_bf16_f32 v60, v60, v60")
    a.op("v_and_b32 v60, 0xffff0000, v60")
    a.op("v_add_f32 v60, 0x3727c5ac, v60")
    a.op("v_cvt_pk_bf16_f32 v60, v60, v60")
    a.op("v_and_b32 v60, 0xffff0000, v60")
    a.op("v_sqrt_f32 v60, v60")
    a.op("s_nop 0")
    a.op("v_cvt_pk_bf16_f32 v60, v60, v60")
    a.op("v_and_b32 v60, 0xffff0000, v60")
    a.op("v_rcp_f32 v60, v60")
    a.op("v_cvt_pk_bf16_f32 v58, -v58, -v58")
    a.op("v_lshlrev_b32 v1, 2, v1")
    a.op(f"s_lshl_b32 s{T+1}, s{T}, 2")
    a.op("v_cmp_eq_u32 vcc, 0, v2")
    a.op(f"s_and_saveexec_b64 s[{T+8}:{T+9}], vcc")
    a.op(f"buffer_store_dword v58, v1, s[{SRD_WS}:{SRD_WS+3}], s{T+1} offen{sc}")
    a.op(f"s_add_u32 s{T+1}, s{T+1}, {OFF_R}")
    a.op(f"buffer_store_dword v60, v1, s[{SRD_WS}:{SRD_WS+3}], s{T+1} offen{sc}")
    a.op(f"s_mov_b64 exec, s[{T+8}:{T+9}]")
    a.op("s_cmp_ge_u32 s2, 195")
    a.op(f"s_cbranch_scc1 L_{tagp}_done")
    a.op("s_waitcnt vmcnt(2)")
    for d in range(4):
        a.op(f"v_lshlrev_b32 v{48+2*d}, 16, v{16+d}")
        a.op(f"v_and_b32 v{49+2*d}, 0xffff0000, v{16+d}")
    for j in range(1, 8):
        for d in range(4):
            r = 16 + 4*j + d
            a.op(f"v_lshlrev_b32 v56, 16, v{r}")
            a.op(f"v_and_b32 v{r}, 0xffff0000, v{r}")
            a.op(f"v_add_f32 v{48+2*d}, v{48+2*d}, v56")
            a.op(f"v_add_f32 v{49+2*d}, v{49+2*d}, v{r}")
    a.op("v_lshrrev_b32 v14, 4, v0")
    a.op(f"v_add_u32 v14, s{T+7}, v14") if False else None
    a.op(f"s_lshl_b32 s{T+7}, s{S_WAVE}, 11")
    a.op("v_lshlrev_b32 v14, 9, v14")
    a.op("v_lshl_add_u32 v14, v15, 5, v14")
    a.op(f"v_add_u32 v14, s{T+7}, v14")
    a.op(f"ds_write_b128 v14, v[48:51] offset:{lds_base}")
    a.op(f"ds_write_b128 v14, v[52:55] offset:{lds_base+16}")
    a.op("s_waitcnt lgkmcnt(0)")
    a.op("s_barrier")
    a.op(f"s_cmp_ge_u32 s{S_WAVE}, 2")
    a.op(f"s_cbranch_scc1 L_{tagp}_done")
    a.op(f"s_lshl_b32 s{T+7}, s{S_WAVE}, 8")
    a.op("v_lshlrev_b32 v14, 2, v0")
    a.op(f"v_add_u32 v14, s{T+7}, v14")
    for j in range(16):
        a.op(f"ds_read_b32 v{16+j}, v14 offset:{lds_base + 512*j}")
    a.op("s_waitcnt lgkmcnt(0)")
    for st in (8, 4, 2, 1):
        for j in range(st):
            a.op(f"v_add_f32 v{16+j}, v{16+j}, v{16+j+st}")
    a.op(f"s_mul_i32 s{T+6}, s{T+2}, {4992*4}")
    a.op(f"s_lshl_b32 s{T+7}, s{T+3}, 9")
    a.op(f"s_add_u32 s{T+6}, s{T+6}, s{T+7}")
    a.op(f"s_add_u32 s{T+6}, s{T+6}, {OFF_CS}")
    a.op(f"buffer_store_dword v16, v14, s[{SRD_WS}:{SRD_WS+3}], s{T+6} offen{sc}")
    a.label(f"L_{tagp}_done")
    a.op("s_waitcnt vmcnt(0) lgkmcnt(0)")
```

```python
import sys
from common import *
import stats, gemm1, attn, gemm2

HDR = open("parallel_sum__sliding_block__glu_gated_glu__prompt.s.ref").read().split("; Override launch")[0]

def all_srds(a):
    srd(a, SRD_X, S_X, 2048*640*2)
    srd(a, SRD_WS, S_WS, WS_BYTES)

def kernel(name, body, srds):
    a = Asm()
    prologue(a, name, f"L_{name}_end", f"L_{name}_codeend")
    for (d, p, n) in srds: srd(a, d, p, n)
    body(a)
    a.label(f"L_{name}_end")
    a.op("s_endpgm")
    a.label(f"L_{name}_codeend")
    return resolve(a.L)

X = (SRD_X, S_X, 2048*640*2); WS = (SRD_WS, S_WS, WS_BYTES)
WQ = (SRD_WQKV, S_WQKV, 640*1920*2); WG = (SRD_WG, S_WG, 640*1536*2); WU = (SRD_WU, S_WU, 640*1536*2)
WO = (SRD_WO, S_WO, 640*640*2); WD = (SRD_WD, S_WD, 1536*640*2); OUT = (SRD_OUT, S_OUT, 2048*640*2)
ks = [("k0_kernel", lambda a: stats.stats_phase(a), [X, WS], 8192),
      ("k1_kernel", lambda a: gemm1.gemm1_phase(a), [X, WQ, WG, WU, WS], 163840),
      ("k2_kernel", lambda a: attn.attn_phase(a), [WS], 0),
      ("k3_kernel", lambda a: gemm2.gemm2_phase(a), [X, WS, WO, WD, OUT], 163840)]
out = [HDR.rstrip()]
for n, _, _, lds in ks:
    out.append(f"; @launch kernel={n} grid=(256,1,1) block=(256,1,1) lds={lds}")
out.append('.amdgcn_target "amdgcn-amd-amdhsa--gfx950"\n.text')
for n, b, s, lds in ks:
    out.append(kernel(n, b, s))
out.append('.section .rodata,"a"')
for n, _, _, _ in ks:
    out.append(descriptor(n))
dst = sys.argv[1] if len(sys.argv) > 1 else "v1.s"
open(dst, "w").write("\n".join(out) + "\n")
print("wrote", dst, sum(len(x) for x in out), "bytes")
```

```python
from asmlib import *

OFF_NEGM = 0
OFF_R    = 8192
OFF_CS   = 16384
OFF_QK   = 1 << 20
OFF_V    = 8 << 20
OFF_ACT  = 12 << 20
WS_BYTES = 24 << 20
CHUNK = 2048 * 16

S_X, S_WQKV, S_WO, S_BX, S_WG, S_WU, S_WD, S_OUT = 4, 6, 8, 10, 12, 14, 16, 18
S_DBG, S_WS = 20, 22
SRD_X, SRD_WQKV, SRD_WG, SRD_WU, SRD_WS, SRD_WO, SRD_WD, SRD_OUT, SRD_DBG = 24, 28, 32, 36, 40, 44, 48, 52, 56
SRD_TMP = 60
S_WAVE = 64
S_T0 = 66

def srd(a, dst, ptr, nbytes):
    a.op(f"s_mov_b32 s{dst}, s{ptr}")
    a.op(f"s_and_b32 s{dst+1}, s{ptr+1}, 0xffff")
    a.op(f"s_mov_b32 s{dst+2}, {nbytes}")
    a.op(f"s_mov_b32 s{dst+3}, 0x20000")

def prologue(a, name, endlabel, codeend, nwg=256, pf_loads=1):
    a.raw(f".globl {name}\n.p2align 8\n.type {name},@function\n{name}:")
    a.op(f"s_cmp_ge_u32 s2, {nwg}")
    a.op(f"s_cbranch_scc1 {endlabel}")
    a.op("s_load_dwordx16 s[4:19], s[0:1], 0")
    a.op("s_load_dwordx4 s[20:23], s[0:1], 64")
    a.op(f"s_getpc_b64 s[{SRD_TMP}:{SRD_TMP+1}]")
    a.label(f"{name}_pc")
    a.op(f"s_mov_b32 s{SRD_TMP+2}, {codeend}-{name}_pc")
    a.op(f"s_mov_b32 s{SRD_TMP+3}, 0x20000")
    a.op("v_lshlrev_b32 v1, 7, v0")
    for i in range(pf_loads):
        if i:
            a.op("v_add_u32 v1, 0x8000, v1")
        a.add(vm(f"buffer_load_dword v255, v1, s[{SRD_TMP}:{SRD_TMP+3}], 0 offen", "pf"))
    a.op("v_lshrrev_b32 v1, 6, v0")
    a.op("v_and_b32 v0, 63, v0")
    a.op(f"v_readfirstlane_b32 s{S_WAVE}, v1")
    a.op("s_waitcnt lgkmcnt(0)")

def descriptor(name, vgpr=512, sgpr=102, accum=256):
    return f""".p2align 6
.amdhsa_kernel {name}
  .amdhsa_next_free_vgpr {vgpr}
  .amdhsa_next_free_sgpr {sgpr}
  .amdhsa_accum_offset {accum}
  .amdhsa_group_segment_fixed_size 0
  .amdhsa_kernarg_size 80
  .amdhsa_user_sgpr_count 2
  .amdhsa_user_sgpr_kernarg_segment_ptr 1
  .amdhsa_system_sgpr_workgroup_id_x 1
.end_amdhsa_kernel"""

OFF_TS = 23 << 20
def ts_mark(a, idx):
    a.op("s_memrealtime s[96:97]")
    a.op("s_memtime s[98:99]")
    a.op("s_waitcnt lgkmcnt(0)")
    a.op("v_mov_b32 v254, s96")
    a.op("v_mov_b32 v255, s98")
    a.op(f"s_lshl_b32 s100, s2, 2")
    a.op(f"s_add_u32 s100, s100, s{S_WAVE}")
    a.op(f"s_lshl_b32 s100, s100, 7")
    a.op(f"s_add_u32 s100, s100, {OFF_TS + 8*idx}")
    a.op("v_mov_b32 v253, 0")
    a.add(vm(f"buffer_store_dwordx2 v[254:255], v253, s[{SRD_WS}:{SRD_WS+3}], s100 offen", "ts"))

STAMPS_ON = False
def stamp(a, idx):
    import common
    if not common.STAMPS_ON: return []
    L = [f"s_memtime s[82:83]", "s_waitcnt lgkmcnt(0)", f"s_mov_b32 s{84+idx}, s82"]
    assert idx < 16
    if a is not None: a.add(L)
    return L
def stamp_flush(a, n, slot):
    import common
    if not common.STAMPS_ON: return
    a.op("s_waitcnt vmcnt(0) lgkmcnt(0)")
    a.op(f"s_lshl_b32 s100, s2, 2")
    a.op(f"s_add_u32 s100, s100, s{S_WAVE}")
    a.op(f"s_lshl_b32 s100, s100, 8")
    a.op(f"s_add_u32 s100, s100, {OFF_TS + (1<<18) + 64*slot}")
    a.op("v_mov_b32 v253, 0")
    for i in range(n):
        a.op(f"v_mov_b32 v254, s{84+i}")
        a.op(f"buffer_store_dword v254, v253, s[{SRD_WS}:{SRD_WS+3}], s100 offen offset:{4*i}")
    a.op("s_waitcnt vmcnt(0)")

_poll_id = [0]
def flag_set_ops(phase, vtmp):
    _poll_id[0] += 1
    lab = f"L_fs{_poll_id[0]}"
    return [f"s_cmp_lg_u32 s{S_WAVE}, 0", f"s_cbranch_scc1 {lab}",
            f"v_mov_b32 v{vtmp}, {phase}", f"v_mov_b32 v{vtmp+1}, s2",
            "s_mov_b64 exec, 1",
            f"buffer_store_byte v{vtmp}, v{vtmp+1}, s[{SRD_DBG}:{SRD_DBG+3}], 0 offen sc1",
            "s_mov_b64 exec, -1",
            Ins(lab + ":", "label")]
def poll_all_ops(phase, vtmp):
    _poll_id[0] += 1
    lab = f"L_poll{_poll_id[0]}"
    k = (0x80 - phase) * 0x01010101
    return [f"v_lshlrev_b32 v{vtmp+1}, 2, v0", "s_mov_b32 s81, 0x80000",
            Ins(lab + ":", "label"),
            f"buffer_load_dword v{vtmp}, v{vtmp+1}, s[{SRD_DBG}:{SRD_DBG+3}], 0 offen sc1",
            "s_waitcnt vmcnt(0)",
            f"v_add_u32 v{vtmp}, {hex(k)}, v{vtmp}",
            f"v_and_b32 v{vtmp}, 0x80808080, v{vtmp}",
            f"v_cmp_ne_u32 vcc, 0x80808080, v{vtmp}",
            "s_sub_u32 s81, s81, 1",
            f"s_cbranch_scc1 {lab}_x",
            "s_nop 2",
            f"s_cbranch_vccnz {lab}",
            Ins(lab + "_x:", "label")]
```

```python
from asmlib import *
import struct
def f2u(f): return struct.unpack("<I", struct.pack("<f", f))[0]
LOG2E = 1.4426950408889634

OFF_RS   = 0
OFF_F23  = 32768
OFF_F4   = 65536
OFF_CS   = 131072
OFF_QK   = 1 << 20
QK_RB    = 160 * 512
OFF_V    = 8 << 20
V_P      = 648 * 16
OFF_ACT  = 12 << 20
ACT_RB   = 272 * 512
WS_BYTES = 24 << 20
OFF_TS = 23 << 20

S_X, S_WQKV, S_WO, S_BX, S_WG, S_WU, S_WD, S_OUT = 4, 6, 8, 10, 12, 14, 16, 18
S_DBG, S_WS = 20, 22
SRD_X, SRD_WQKV, SRD_WG, SRD_WU, SRD_WS, SRD_WO, SRD_WD, SRD_OUT, SRD_DBG = 24, 28, 32, 36, 40, 44, 48, 52, 56
SRD_TMP = 60
S_WAVE = 64
S_SPIN = 65
S_NLO, S_NHI = 100, 101

WS = f"s[{SRD_WS}:{SRD_WS+3}]"
SC = " sc1"
LSC = ""

def srd(a, dst, ptr, nbytes):
    a.op(f"s_mov_b32 s{dst}, s{ptr}")
    a.op(f"s_and_b32 s{dst+1}, s{ptr+1}, 0xffff")
    a.op(f"s_mov_b32 s{dst+2}, {nbytes}")
    a.op(f"s_mov_b32 s{dst+3}, 0x20000")

def descriptor(name, vgpr=512, sgpr=102, accum=256):
    return f""".p2align 6
.amdhsa_kernel {name}
  .amdhsa_next_free_vgpr {vgpr}
  .amdhsa_next_free_sgpr {sgpr}
  .amdhsa_accum_offset {accum}
  .amdhsa_group_segment_fixed_size 0
  .amdhsa_kernarg_size 80
  .amdhsa_user_sgpr_count 2
  .amdhsa_user_sgpr_kernarg_segment_ptr 1
  .amdhsa_system_sgpr_workgroup_id_x 1
.end_amdhsa_kernel"""

def cost(x):
    if isinstance(x, (list, tuple)): return sum(cost(y) for y in x)
    if isinstance(x, Ins):
        if x.kind in ("wait_vm", "wait_ds"): return 2
        if x.kind in ("label", "reset", "comment", "raw"): return 0
        if x.kind == "vm": return 8
        if x.kind == "ds": return 4
        t = x.text
    else:
        t = x
    if t.startswith(("v_exp", "v_rcp", "v_sqrt", "v_rsq", "v_log")): return 8
    if t.startswith(("v_cvt_pk", "v_max3")): return 5
    if t.startswith("s_nop"): return 4*(int(t.split()[1]) + 1)
    return 4

def chunked(L, n):
    return [L[i:i+n] for i in range(0, len(L), n)]
def singles(L):
    G = []; pend = []
    for x in L:
        if isinstance(x, Ins) and x.kind in ("wait_vm", "wait_ds"):
            pend.append(x); continue
        G.append(pend + (list(x) if isinstance(x, (list, tuple)) else [x])); pend = []
    if pend: G.append(pend)
    return G

STAMPS_ON = False
def stamp(a, idx):
    import common
    if not common.STAMPS_ON: return []
    assert idx < 15
    L = [f"s_memtime s[82:83]", "s_waitcnt lgkmcnt(0)", f"s_mov_b32 s{84+idx}, s82"]
    if a is not None: a.add(L)
    return L
def stamp_save(a, n, slot, vreg=240):
    import common
    if not common.STAMPS_ON: return
    for i in range(n):
        a.op(f"v_writelane_b32 v{vreg}, s{84+i}, {16*slot + i}")
def stamp_flush(a, vreg=240, area=0):
    import common
    if not common.STAMPS_ON: return
    a.op(f"s_lshl_b32 s99, s2, 2")
    a.op(f"s_add_u32 s99, s99, s{S_WAVE}")
    a.op(f"s_lshl_b32 s99, s99, 8")
    a.op(f"s_add_u32 s99, s99, {OFF_TS + (1<<18)*(1+area)}")
    a.op(f"v_lshlrev_b32 v{vreg+1}, 2, v0")
    a.add(vm(f"buffer_store_dword v{vreg}, v{vreg+1}, s[{SRD_WS}:{SRD_WS+3}], s99 offen", "ts"))

_uid = [0]
def uid():
    _uid[0] += 1
    return _uid[0]
DBG = f"s[{SRD_DBG}:{SRD_DBG+3}]"
def nonce_publish_ops(vt):
    return ["s_memrealtime s[4:5]", f"s_or_b32 s6, s2, s{S_WAVE}", f"s_lshl_b32 s6, s6, 12", f"v_lshlrev_b32 v{vt+2}, 8, v0",
            "s_waitcnt lgkmcnt(0)",
            "s_lshl_b64 s[4:5], s[4:5], 3", "s_bitset1_b32 s5, 31",
            f"v_mov_b32 v{vt}, s4", f"v_mov_b32 v{vt+1}, s5",
            vm(f"buffer_store_dwordx2 v[{vt}:{vt+1}], v{vt+2}, {DBG}, s6 offen sc1", "npub")]
def nonce_issue_ops(vt):
    return [f"v_mov_b32 v{vt+2}, 0", vm(f"buffer_load_dwordx2 v[{vt}:{vt+1}], v{vt+2}, {DBG}, 0 offen sc1", "nonce")]
def nonce_get_ops(vt):
    u = uid()
    get = [f"v_readfirstlane_b32 s{S_NHI}, v{vt+1}", f"v_readfirstlane_b32 s{S_NLO}, v{vt}", "s_nop 0", f"s_cmp_lg_u32 s{S_NHI}, 0"]
    return [wait_vm("nonce")] + get + [f"s_cbranch_scc1 L_nok{u}", f"s_mov_b32 s{S_SPIN}, 0x80000",
            Ins(f"L_nl{u}:", "label"), "s_sleep 2",
            Ins(f"    buffer_load_dwordx2 v[{vt}:{vt+1}], v{vt+2}, {DBG}, 0 offen sc1", "raw"),
            Ins("    s_waitcnt vmcnt(0)", "raw")] + get + [f"s_cbranch_scc1 L_nok{u}",
            f"s_sub_u32 s{S_SPIN}, s{S_SPIN}, 1", f"s_cbranch_scc0 L_nl{u}", Ins(f"L_nok{u}:", "label")]
def flag_set_ops(phase, vt, sline):
    return [f"s_or_b32 s{S_SPIN}, s{S_NLO}, {phase}", f"v_mov_b32 v{vt}, s{S_SPIN}", f"v_mov_b32 v{vt+1}, s{S_NHI}",
            f"s_lshl_b32 s{S_SPIN}, s{S_WAVE}, 25", f"s_add_u32 s{S_SPIN}, s{S_SPIN}, s{sline}",
            f"v_lshlrev_b32 v{vt+2}, 25, v0",
            vm(f"buffer_store_dwordx2 v[{vt}:{vt+1}], v{vt+2}, {WS}, s{S_SPIN} offen sc1", "flag")]
def poll_issue_ops(vt, va, tag):
    return [vm(f"buffer_load_dwordx2 v[{vt}:{vt+1}], v{va}, {WS}, 0 offen sc1", tag)]
def poll_check_ops(phase, vt, va, tag):
    u = uid()
    chk = [f"v_subrev_u32 v{vt}, s{S_NLO}, v{vt}", f"v_subrev_u32 v{vt}, {phase}, v{vt}",
           f"v_cmp_ne_u32 s[62:63], s{S_NHI}, v{vt+1}", f"v_cmp_lt_u32 vcc, {7-phase}, v{vt}",
           "s_nop 0", "s_or_b64 vcc, vcc, s[62:63]"]
    return [wait_vm(tag)] + chk + [f"s_cbranch_scc0 L_pok{u}", f"s_mov_b32 s{S_SPIN}, 0x80000",
         Ins(f"L_pl{u}:", "label"), "s_sleep 2",
         Ins(f"    buffer_load_dwordx2 v[{vt}:{vt+1}], v{va}, {WS}, 0 offen sc1", "raw"),
         Ins("    s_waitcnt vmcnt(0)", "raw")] + chk + [
         f"s_cbranch_scc0 L_pok{u}", f"s_sub_u32 s{S_SPIN}, s{S_SPIN}, 1", f"s_cbranch_scc0 L_pl{u}",
         Ins(f"L_pok{u}:", "label")]
```

```python
import re
REG = re.compile(r"(?<![\w.])(-?)(?:abs\()?([vas])(?:(\d+)|\[(\d+):(\d+)\])")
def regs(op):
    out = set()
    for m in REG.finditer(op):
        kind = m.group(2)
        lo = int(m.group(3) if m.group(3) is not None else m.group(4))
        hi = int(m.group(3) if m.group(3) is not None else m.group(5))
        for r in range(lo, hi+1): out.add((kind, r))
    if re.search(r"\bvcc\b", op): out |= {("s", 106), ("s", 107)}
    if re.search(r"\bm0\b", op): out.add(("s", 124))
    return out
TRANS = ("v_exp_f32", "v_rcp_f32", "v_sqrt_f32", "v_rsq_f32", "v_log_f32")
def classify(line):
    t = line.strip()
    if not t or t.startswith((";", ".")) or t.endswith(":"): return None
    t = t.split(";")[0].strip()
    p = t.split(None, 1)
    mn = p[0]; ops = [o.strip() for o in p[1].split(",")] if len(p) > 1 else []
    d = dict(mn=mn, w=set(), r=set(), kind="other", C=set(), AB=set(), passes=0, sdata=set())
    if mn.startswith("v_mfma"):
        d["kind"] = "mfma"; d["w"] = regs(ops[0]); d["AB"] = regs(ops[1]) | regs(ops[2]); d["C"] = regs(ops[3]); d["r"] = d["AB"] | d["C"]
        d["passes"] = 8 if "32x32" in mn else 4
        d["Cop"] = ops[3]; d["Dop"] = ops[0]
    elif mn.startswith("v_"):
        d["kind"] = "valu"
        d["w"] = regs(ops[0]); d["r"] = set().union(*[regs(o) for o in ops[1:]]) if len(ops) > 1 else set()
        if mn.startswith(("v_fmac", "v_permlane")): d["r"] |= d["w"]
        if mn.startswith("v_permlane"): d["w"] |= regs(ops[1])
        if mn.startswith("v_cndmask") and len(ops) == 3: d["r"] |= regs("vcc")
        d["trans"] = mn.split("_e")[0] in TRANS
        d["dpp"] = "_dpp" in mn
    elif mn.startswith(("buffer_", "global_")):
        d["kind"] = "vmem"
        allr = set().union(*[regs(o) for o in ops]) if ops else set()
        if "store" in mn:
            d["r"] = allr
            if "x4" in mn or "x3" in mn: d["sdata"] = regs(ops[0])
        elif " lds" in t:
            d["r"] = allr | {("s", 124)}; d["lds"] = True
        elif mn in ("buffer_inv", "buffer_wbl2"):
            pass
        else:
            d["w"] = regs(ops[0]); d["r"] = set().union(*[regs(o) for o in ops[1:]])
    elif mn.startswith("ds_"):
        d["kind"] = "ds"
        if "read" in mn:
            d["w"] = regs(ops[0]); d["r"] = set().union(*[regs(o) for o in ops[1:]])
        else:
            d["r"] = set().union(*[regs(o) for o in ops])
    elif mn.startswith("s_"):
        d["kind"] = "salu"
        if mn == "s_nop": d["nop"] = int(ops[0]) + 1
        elif ops and not mn.startswith(("s_cmp", "s_cbranch", "s_branch", "s_waitcnt", "s_barrier", "s_sleep", "s_setprio", "s_endpgm")):
            d["w"] = regs(ops[0]); d["r"] = set().union(*[regs(o) for o in ops[1:]]) if len(ops) > 1 else set()
    return d

def need(prev, cur):
    n = 0
    vw = {x for x in prev["w"] if x[0] != "s"}
    sw = {x for x in prev["w"] if x[0] == "s"}
    if prev["kind"] == "mfma":
        big = prev["passes"] == 8
        if cur["kind"] == "mfma":
            if vw & cur["AB"]: n = max(n, 12 if big else 8)
            if vw & cur["C"]:
                if not (cur["Cop"] == prev["Dop"] and cur["passes"] == prev["passes"]): n = max(n, 10 if big else 6)
        else:
            if vw & (cur["r"] | cur["w"]): n = max(n, 12 if big else 8)
            if cur["kind"] == "valu" and (prev["C"] & cur["w"]): n = max(n, 7 if big else 3)
    if prev["kind"] == "valu":
        if cur["kind"] == "mfma" and (vw & cur["r"]): n = max(n, 2)
        if cur["kind"] == "valu":
            if prev.get("trans") and not cur.get("trans") and (vw & cur["r"]): n = max(n, 1)
            if cur["mn"].startswith("v_permlane") and (vw & cur["r"]): n = max(n, 2)
            if cur.get("dpp") and (vw & cur["r"]): n = max(n, 2)
            if cur["mn"].startswith(("v_readfirstlane", "v_readlane")) and (vw & cur["r"]): n = max(n, 1)
            if sw & cur["r"]: n = max(n, 2)
        if cur["kind"] == "vmem" and (sw & cur["r"]): n = max(n, 5)
    if prev["kind"] == "vmem" and prev["sdata"] & cur["w"]:
        n = max(n, 2 if cur["kind"] in ("valu", "mfma") else 1)
    if prev["kind"] == "salu" and ("s", 124) in prev["w"] and cur.get("lds"): n = max(n, 1)
    return n

def fix(text):
    out = []
    hist = []
    ninserted = 0
    for line in text.split("\n"):
        c = classify(line)
        if c is None:
            out.append(line); continue
        req = 0
        dist = 0
        for p in reversed(hist):
            r = need(p, c)
            if r > dist: req = max(req, r - dist)
            dist += p.get("nop", 1)
            if dist >= 13: break
        if req:
            ninserted += 1
            out.append(f"    s_nop {req-1}")
            hist.append(dict(mn="s_nop", w=set(), r=set(), kind="salu", C=set(), AB=set(), passes=0, sdata=set(), nop=req))
        out.append(line)
        hist.append(c)
        if len(hist) > 16: hist = hist[-16:]
    return "\n".join(out), ninserted
```

```python
from common import *
A_K1 = 0
A_V = 40
A_Q1 = 120
V_K2 = 128
V_Q2 = 148
V_MD = 152
V_MO = 168
V_C = [16, 192]
V_S = 64
V_O = [48, 224]
V_M = 8
S_HD, S_QP, S_A, S_B, S_C, S_D, S_KB, S_K2B, S_VB = 4, 5, 6, 8, 9, 10, 11, 12, 13
V_PA = 7
NEG = f2u(-1e30)
NEG_BF16 = NEG >> 16

def early_setup_ops():
    L = []
    o = L.append
    o(f"s_and_b32 s{S_HD}, s2, 7")
    o(f"s_lshl_b32 s{S_HD}, s{S_HD}, 2")
    o(f"s_add_u32 s{S_HD}, s{S_HD}, s{S_WAVE}")
    o(f"s_lshr_b32 s{S_QP}, s2, 3")
    o(f"s_mul_i32 s{S_A}, s{S_HD}, 5")
    o(f"s_add_u32 s{S_A}, s{S_A}, 1")
    o(f"s_lshr_b32 s{S_A}, s{S_A}, 1")
    o(f"s_lshl_b32 s{S_KB}, s{S_A}, 9")
    o(f"s_and_b32 s{S_D}, s{S_HD}, 1")
    o(f"s_movk_i32 s{S_B}, 1024")
    o([f"s_cmp_eq_u32 s{S_D}, 1", f"s_cselect_b32 s{S_B}, {hex((-512 + 8) & 0xffffffff)}, s{S_B}"])
    o(f"s_add_u32 s{S_K2B}, s{S_KB}, s{S_B}")
    o(f"s_lshl_b32 s{S_C}, s{S_QP}, 1")
    o(f"s_sub_u32 s{S_C}, s{S_C}, 8")
    o("v_and_b32 v1, 31, v0")
    o("v_lshrrev_b32 v2, 5, v0")
    o("v_lshlrev_b32 v3, 4, v1")
    o("v_lshlrev_b32 v4, 4, v0")
    o("v_bfe_u32 v5, v0, 2, 1")
    o("v_bfe_u32 v6, v0, 3, 1")
    o("v_lshl_or_b32 v5, v5, 1, v6")
    o("v_and_b32 v6, 3, v0")
    o("v_lshl_add_u32 v5, v5, 2, v6")
    o(f"s_lshl_b32 s{S_A}, s{S_D}, 2")
    o(f"v_add_u32 v5, s{S_A}, v5")
    o(f"s_lshl_b32 s{S_A}, s{S_D}, 4")
    o(f"v_subrev_u32 v6, s{S_A}, v1")
    o(["v_cmp_gt_u32 vcc, 16, v1", "v_cndmask_b32 v5, v6, v5, vcc"])
    o(f"s_mul_i32 s{S_VB}, s{S_HD}, 20")
    o(f"s_sub_u32 s{S_A}, 640, s{S_VB}")
    o(f"v_mov_b32 v6, s{S_A}")
    o(["v_cmp_gt_u32 vcc, 20, v1", "v_cndmask_b32 v5, v6, v5, vcc"])
    o(f"v_mul_u32_u24 v6, {V_P}, v2")
    o("v_lshl_add_u32 v5, v5, 4, v6")
    o(f"s_lshl_b32 s{S_VB}, s{S_VB}, 4")
    o(f"s_add_u32 s{S_VB}, s{S_VB}, {OFF_V}")
    o("v_and_b32 v6, 3, v0")
    o("v_min_u32 v6, 2, v6")
    o(f"s_lshr_b32 s{S_A}, s{S_QP}, 1")
    o(f"v_sub_u32 v6, s{S_A}, v6")
    o("v_max_i32 v6, 0, v6")
    o(f"s_and_b32 s{S_A}, s2, 7")
    o(f"s_mul_i32 s{S_A}, s{S_A}, 80")
    o("v_bfe_u32 v8, v0, 2, 1")
    o("v_mul_u32_u24 v8, 79, v8")
    o(f"v_add_u32 v8, s{S_A}, v8")
    o("v_lshrrev_b32 v8, 7, v8")
    o("v_bfe_u32 v9, v0, 3, 2")
    o("v_min_u32 v9, 2, v9")
    o("v_mad_u32_u24 v8, v9, 5, v8")
    o("v_lshl_add_u32 v6, v6, 4, v8")
    o(f"v_lshlrev_b32 v{V_PA}, 7, v6")
    o(f"v_add_u32 v{V_PA}, {OFF_F23}, v{V_PA}")
    return L

def early_load_groups(t0):
    G = []
    def kt(j): return [f"s_add_u32 s{S_A}, s{S_C}, {j}", f"s_max_i32 s{S_A}, s{S_A}, 0"]
    for j in range(10):
        G.append((A_K1+4*j+3, kt(j) + [f"s_mul_i32 s{S_A}, s{S_A}, {QK_RB}", f"s_add_u32 s{S_A}, s{S_A}, s{S_KB}", f"s_add_u32 s{S_A}, s{S_A}, {OFF_QK + 80*512}",
                 vm(f"buffer_load_dwordx4 {ar(A_K1+4*j,4)}, v4, {WS}, s{S_A} offen{LSC}", ("k1", j))]))
        if j == 1:
            for qb in range(2):
                G.append((A_Q1+4*qb+3, [f"s_mul_i32 s{S_A}, s{S_QP}, {2*QK_RB}", f"s_add_u32 s{S_A}, s{S_A}, s{S_KB}", f"s_add_u32 s{S_A}, s{S_A}, {OFF_QK + qb*QK_RB}",
                     vm(f"buffer_load_dwordx4 {ar(A_Q1+4*qb,4)}, v4, {WS}, s{S_A} offen{LSC}", ("q1", qb))]))
    for j in range(10):
        G.append((A_V+8*j+3, kt(j) + [f"s_mul_i32 s{S_A}, s{S_A}, {4*V_P}", f"s_add_u32 s{S_A}, s{S_A}, s{S_VB}",
                 vm(f"buffer_load_dwordx4 {ar(A_V+8*j,4)}, v5, {WS}, s{S_A} offen{LSC}", ("v", j, 0))]))
        G.append((A_V+8*j+7, [f"s_add_u32 s{S_A}, s{S_A}, {2*V_P}",
                 vm(f"buffer_load_dwordx4 {ar(A_V+8*j+4,4)}, v5, {WS}, s{S_A} offen{LSC}", ("v", j, 1))]))
    for i, (r, g) in enumerate(G):
        assert r // 8 < t0, (r, t0)
    return [g for _, g in G]

def late_load_ops():
    L = []
    o = L.append
    o(f"s_mul_i32 s{S_A}, s{S_QP}, {2*QK_RB}")
    o(f"s_add_u32 s{S_A}, s{S_A}, s{S_K2B}")
    o(f"s_add_u32 s{S_A}, s{S_A}, {OFF_QK}")
    for qb in range(2):
        o(f"v_mov_b32 v{V_Q2+2*qb}, 0x3f80")
        o(f"v_mov_b32 v{V_Q2+2*qb+1}, 0")
    for j in range(10):
        o(f"s_add_u32 s{S_B}, s{S_C}, {j}")
        o(f"s_cmp_lt_i32 s{S_B}, 0")
        o(f"s_cselect_b32 s{S_B}, {NEG_BF16}, 0")
        o(f"v_mov_b32 v{V_K2+2*j}, s{S_B}")
        o(f"v_mov_b32 v{V_K2+2*j+1}, 0")
    o("s_mov_b32 exec_hi, 0")
    for qb in range(2):
        o(vm(f"buffer_load_dwordx2 {vr(V_Q2+2*qb,2)}, v3, {WS}, s{S_A} offen{LSC}", ("q2", qb)))
        if qb == 0: o(f"s_add_u32 s{S_A}, s{S_A}, {QK_RB}")
    for j in range(10):
        o(f"s_add_u32 s{S_A}, s{S_C}, {j}")
        o(f"s_max_i32 s{S_A}, s{S_A}, 0")
        o(f"s_mul_i32 s{S_A}, s{S_A}, {QK_RB}")
        o(f"s_add_u32 s{S_A}, s{S_A}, s{S_K2B}")
        o(f"s_add_u32 s{S_A}, s{S_A}, {OFF_QK + 80*512}")
        o(vm(f"buffer_load_dwordx2 {vr(V_K2+2*j,2)}, v3, {WS}, s{S_A} offen{LSC}", ("k2", j)))
    o("s_mov_b64 exec, -1")
    return L

def mask_ops():
    L = ["v_lshlrev_b32 v6, 2, v2", "v_sub_u32 v6, v1, v6", f"v_mov_b32 v7, {hex(NEG)}"]
    for r in range(0, 16, 2):
        k0 = 8*(r >> 2) + (r & 3); k1 = k0 + 1
        L += [f"v_cmp_le_i32 vcc, {k0}, v6", f"v_cmp_le_i32 s[14:15], {k1}, v6", "s_nop 0",
              f"v_cndmask_b32 v{V_MD+r}, v7, 0, vcc", f"v_cndmask_b32 v{V_MO+r}, 0, v7, vcc",
              f"v_cndmask_b32 v{V_MD+r+1}, v7, 0, s[14:15]", f"v_cndmask_b32 v{V_MO+r+1}, 0, v7, s[14:15]"]
    return L

def qk(qb, j, dst, c):
    return [[wait_vm(("k1", j)), wait_vm(("q1", qb)),
             f"v_mfma_f32_32x32x16_bf16 {vr(dst,16)}, {ar(A_K1+4*j,4)}, {ar(A_Q1+4*qb,4)}, {c}"],
            [wait_vm(("k2", j)),
             f"v_mfma_f32_32x32x8_bf16 {vr(dst,16)}, {vr(V_K2+2*j,2)}, {vr(V_Q2+2*qb,2)}, {vr(dst,16)}"]]

def attn_compute(a, extra):
    p10 = [1, 2, 3, 4, 5, 6, 7, 0, 8]
    order = [("P1", 0, i) for i in p10]
    seq = [("P1", 1, 0), ("FIN", 0, 0), ("P1", 1, 1), ("P1", 1, 2)]
    nx = 3
    for i in range(9):
        seq.append(("P2", 0, i))
        if i == 3: seq.append(("DG", 0, 0))
        if nx < 9: seq.append(("P1", 1, nx)); nx += 1
        if i == 6: seq.append(("FIN", 1, 0))
    order += seq
    for i in range(9):
        order.append(("P2", 1, i))
        if i == 3: order.append(("DG", 1, 0))
    sun = [u for u in order if u[0] in ("P1", "P2")]
    sbuf = {u: V_S + 16*(n % 4) for n, u in enumerate(sun)}
    first_p1 = {0: ("P1", 0, p10[0]), 1: ("P1", 1, 0)}
    def mf(u):
        kind, qb, i = u
        j = qb + i
        if kind == "P1":
            c = vr(V_MO, 16) if i == 0 else (vr(V_MD, 16) if i == 8 else "0")
        else:
            cb = V_C[qb]
            c = vr(cb + 16, 16) if i in (0, 8) else vr(cb, 16)
        return qk(qb, j, sbuf[u], c)
    def valu(u):
        kind, qb, i = u
        m = V_M + qb
        if kind == "P1":
            s = sbuf[u]; L = []
            if u == first_p1[qb]:
                L.append(f"v_max3_f32 v{m}, v{s}, v{s+1}, v{s+2}")
                L.append(f"v_max_f32 v{m}, v{m}, v{s+3}")
                rest = range(4, 16, 2)
            else:
                rest = range(0, 16, 2)
            for r in rest: L.append(f"v_max3_f32 v{m}, v{m}, v{s+r}, v{s+r+1}")
            return L, []
        cb = V_C[qb]
        if kind == "FIN":
            L = [f"v_mov_b32 v10, v{m}", f"v_permlane32_swap_b32 v{m}, v10", f"v_max_f32 v{m}, v{m}, v10"]
            for r in range(16): L.append(f"v_sub_f32 v{cb+16+r}, v{V_MO+r}, v{m}")
            for r in range(16): L.append(f"v_sub_f32 v{cb+r}, 0, v{m}")
            return L, []
        if kind == "DG":
            return [f"v_sub_f32 v{cb+16+r}, v{V_MD+r}, v{m}" for r in range(16)], []
        s = sbuf[u]; j = qb + i
        L = []; post = []
        for r in range(16): L.append(f"v_exp_f32 v{s+r}, v{s+r}")
        L = L[:9]
        for k in range(4):
            L.append(f"v_cvt_pk_bf16_f32 v{s+k}, v{s+2*k}, v{s+2*k+1}")
            L.append(f"v_exp_f32 v{s+9+k}, v{s+9+k}")
        L += [f"v_exp_f32 v{s+13}, v{s+13}", f"v_exp_f32 v{s+14}, v{s+14}", f"v_exp_f32 v{s+15}, v{s+15}"]
        for k in range(4): L.append(f"v_cvt_pk_bf16_f32 v{s+8+k}, v{s+8+2*k}, v{s+8+2*k+1}")
        o = V_O[qb]
        for t in range(2):
            c = "0" if (i == 0 and t == 0) else vr(o, 16)
            post.append([wait_vm(("v", j, t)), f"v_mfma_f32_32x32x16_bf16 {vr(o,16)}, {ar(A_V+8*j+4*t,4)}, {vr(s+8*t,4)}, {c}"])
        return L, post
    pos = {u: n for n, u in enumerate(order)}
    issued = 0
    side = []
    def can_issue(u, n):
        kind, qb, i = u
        if kind == "P2":
            if pos[("FIN", qb, 0)] >= n: return False
            if i == 8 and pos[("DG", qb, 0)] >= n: return False
        return True
    mk = mask_ops()
    a.add(mk[:17])
    a.add(wait_vm(("q2", 1)))
    M0 = mf(sun[0]) + mf(sun[1]) + mf(sun[2])
    rest = mk[17:]
    for gi, g in enumerate(M0):
        a.add(g); a.add(rest[7*gi:7*gi+7])
    assert 7*len(M0) >= len(rest)
    issued = 3
    pend_pv = []
    done_s = 0
    for n, u in enumerate(order):
        if n in extra: side += extra[n]
        L, post = valu(u)
        if u[0] in ("P1", "P2"):
            assert sun.index(u) < issued, ("QK not issued for", u)
            done_s_after = sun.index(u) + 1
        else:
            done_s_after = done_s
        M = list(pend_pv)
        while issued < len(sun) and issued <= done_s + 2 and can_issue(sun[issued], n):
            M += mf(sun[issued]); issued += 1
        k = len(M)
        tot = cost(L)
        acc = 0; mi = 0
        for x in L:
            while mi < k and acc >= mi * tot / k:
                a.add(M[mi]); mi += 1
                if side: a.add(side.pop(0))
            a.add(x); acc += cost(x)
        while mi < k:
            a.add(M[mi]); mi += 1
            if side: a.add(side.pop(0))
        spare = 32*k - tot - 8*k
        while side and spare > 0:
            g = side.pop(0); a.add(g); spare -= cost(g)
        pend_pv = post
        done_s = done_s_after
    for g in pend_pv: a.add(g)
    while side: a.add(side.pop(0))
    a.op(f"s_mul_i32 s{S_C}, s{S_QP}, {2*ACT_RB}")
    a.op(f"s_add_u32 s{S_C}, s{S_C}, {OFF_ACT + 192*512}")
    a.op(f"s_add_u32 s{S_A}, s{S_KB}, s{S_C}")
    a.op(f"s_add_u32 s{S_B}, s{S_K2B}, s{S_C}")
    for qb in range(2):
        o = V_O[qb]
        a.op(f"v_rcp_f32 v{10+qb}, v{o+12}")
        for r in range(12): a.op(f"v_mul_f32 v{o+r}, v{o+r}, v{10+qb}")
        for k in range(6): a.op(f"v_cvt_pk_bf16_f32 v{o+k}, v{o+2*k}, v{o+2*k+1}")
        a.add(vm(f"buffer_store_dwordx4 {vr(o,4)}, v4, {WS}, s{S_A} offen{SC}", "ost"))
        a.op("s_mov_b32 exec_hi, 0")
        a.add(vm(f"buffer_store_dwordx2 {vr(o+4,2)}, v3, {WS}, s{S_B} offen{SC}", "ost"))
        a.op("s_mov_b64 exec, -1")
        if qb == 0:
            a.op(f"s_add_u32 s{S_A}, s{S_A}, {ACT_RB}")
            a.op(f"s_add_u32 s{S_B}, s{S_B}, {ACT_RB}")
    return len(order)
```

```python
from common import *
import p_attn

V_XV, V_WV, V_GV, V_UV, V_G2, V_U2 = 1, 2, 3, 4, 5, 6
V_XA = 7
V_WA = 11
V_BA = 13
V_B2A = 15
V_ST = 16
V_SV = 17
V_R = 18
V_R2 = 20
V_XE = 22
V_WE = 26
V_TMP = 36
V_CSV = 190
V_CSG = 191
V_CT = 128
V_WF = 40
ACC0, ACC1 = 64, 128
V_XF = 192

S_M, S_N, S_MG, S_NG = 66, 67, 68, 69
S_XB, S_WB, S_GB, S_G2B = 70, 71, 72, 73
S_LW = 74
S_A, S_B = 75, 76
S_STQ, S_STH = 77, 78
S_CSB = 79
S_RB = 80
S_F = 81
S_ODD = 3
S_FL = 7
NSLOT = 9
SLOT = 16384

def xfrag(t, mb):
    if t < 32: return ar((t*2 + mb)*4, 4)
    return vr(V_XF + ((t-32)*2 + mb)*4, 4)

def setup(a):
    a.op(f"s_and_b32 s{S_A}, s2, 1")
    a.op(f"s_lshl_b32 s{S_A}, s{S_A}, 3")
    a.op(f"s_bfe_u32 s{S_B}, s2, 0x30003")
    a.op(f"s_add_u32 s{S_M}, s{S_A}, s{S_B}")
    a.op(f"s_bfe_u32 s{S_A}, s2, 0x20001")
    a.op(f"s_lshl_b32 s{S_A}, s{S_A}, 2")
    a.op(f"s_lshr_b32 s{S_B}, s2, 6")
    a.op(f"s_add_u32 s{S_N}, s{S_A}, s{S_B}")
    a.op(f"s_and_b32 s{S_MG}, s{S_WAVE}, 1")
    a.op(f"s_lshr_b32 s{S_NG}, s{S_WAVE}, 1")
    a.op(f"s_lshl_b32 s{S_LW}, s{S_WAVE}, 10")
    a.op("v_lshrrev_b32 v32, 3, v0")
    a.op("v_and_b32 v33, 7, v0")
    a.op("v_lshrrev_b32 v34, 4, v0")
    a.op(f"s_lshl_b32 s{S_A}, s{S_MG}, 2")
    a.op(f"v_add_u32 v35, s{S_A}, v34")
    a.op("v_xor_b32 v35, v35, v33")
    a.op(f"v_mul_u32_u24 v{V_XV}, 1280, v32")
    a.op(f"v_lshl_add_u32 v{V_XV}, v35, 4, v{V_XV}")
    a.op(f"s_lshl_b32 s{S_A}, s{S_M}, 7")
    a.op(f"s_lshl_b32 s{S_B}, s{S_WAVE}, 3")
    a.op(f"s_add_u32 s{S_A}, s{S_A}, s{S_B}")
    a.op(f"s_mul_i32 s{S_XB}, s{S_A}, 1280")
    a.op("v_and_b32 v35, 15, v0")
    a.op("v_lshlrev_b32 v36, 2, v34")
    a.op("v_xor_b32 v35, v35, v36")
    a.op(f"v_mul_u32_u24 v{V_WV}, 3840, v34")
    a.op(f"v_lshl_add_u32 v{V_WV}, v35, 4, v{V_WV}")
    a.op(f"s_min_u32 s{S_A}, s{S_N}, 14")
    a.op(f"s_lshl_b32 s{S_A}, s{S_A}, 8")
    a.op(f"s_mul_i32 s{S_WB}, s{S_WAVE}, {4*3840}")
    a.op(f"s_add_u32 s{S_WB}, s{S_WB}, s{S_A}")

def setup2(a):
    L = []
    o = L.append
    o("v_lshrrev_b32 v32, 3, v0")
    o("v_and_b32 v33, 7, v0")
    o("v_lshrrev_b32 v34, 4, v0")
    o("v_and_b32 v35, 1, v34")
    o("v_lshlrev_b32 v35, 1, v35")
    o("v_xor_b32 v35, v35, v33")
    o(f"v_mul_u32_u24 v{V_GV}, 3072, v32")
    o(f"v_lshl_add_u32 v{V_GV}, v35, 4, v{V_GV}")
    o(f"v_xor_b32 v{V_UV}, 64, v{V_GV}")
    o(f"s_mul_i32 s{S_A}, s{S_N}, 192")
    o(f"s_and_b32 s{S_ODD}, s{S_N}, 1")
    o(f"s_lshl_b32 s{S_B}, s{S_ODD}, 6")
    o(f"s_mul_i32 s{S_GB}, s{S_WAVE}, {8*3072}")
    o(f"s_add_u32 s{S_GB}, s{S_GB}, s{S_A}")
    o(f"s_add_u32 s{S_GB}, s{S_GB}, s{S_B}")
    o("v_lshrrev_b32 v35, 2, v0")
    o("v_and_b32 v36, 3, v0")
    o(f"v_mul_u32_u24 v{V_G2}, 3072, v35")
    o(f"v_lshl_add_u32 v{V_G2}, v36, 4, v{V_G2}")
    o(f"v_xor_b32 v{V_U2}, 32, v{V_G2}")
    o(f"s_mul_i32 s{S_G2B}, s{S_WAVE}, {16*3072}")
    o(f"s_add_u32 s{S_G2B}, s{S_G2B}, s{S_A}")
    o(f"s_lshl_b32 s{S_B}, s{S_ODD}, 7")
    o(f"s_sub_u32 s{S_G2B}, s{S_G2B}, s{S_B}")
    o(f"s_add_u32 s{S_G2B}, s{S_G2B}, 128")
    o("v_and_b32 v32, 31, v0")
    o("v_lshrrev_b32 v33, 5, v0")
    o("v_bfe_u32 v35, v0, 1, 3")
    o("v_xor_b32 v35, v35, v33")
    o(f"s_lshl_b32 s{S_A}, s{S_MG}, 13")
    o("v_lshlrev_b32 v36, 7, v32")
    o(f"v_add_u32 v36, s{S_A}, v36")
    for ks in range(4):
        o(f"v_xor_b32 v37, {2*ks}, v35")
        o(f"v_lshl_add_u32 v{V_XA+ks}, v37, 4, v36")
    o("v_bfe_u32 v35, v0, 2, 2")
    o("v_and_b32 v36, 1, v0")
    o("v_bfe_u32 v37, v0, 1, 1")
    o("v_lshl_or_b32 v36, v36, 1, v37")
    o("v_bfe_u32 v37, v0, 4, 1")
    o("v_lshl_add_u32 v38, v33, 3, v35")
    o(f"s_lshl_b32 s{S_A}, s{S_NG}, 1")
    o("v_lshlrev_b32 v39, 8, v38")
    o("v_lshl_add_u32 v39, v37, 5, v39")
    o("v_lshl_add_u32 v39, v36, 3, v39")
    o(f"v_xor_b32 v34, s{S_A}, v35")
    o(f"v_lshl_add_u32 v{V_WA}, v34, 6, v39")
    o(f"v_xor_b32 v{V_WA+1}, 64, v{V_WA}")
    o("v_lshlrev_b32 v39, 7, v38")
    o("v_lshl_add_u32 v39, v37, 13, v39")
    o("v_lshl_add_u32 v39, v36, 3, v39")
    o("v_lshrrev_b32 v34, 1, v35")
    o("v_lshl_or_b32 v34, v37, 1, v34")
    o(f"v_xor_b32 v34, s{S_A}, v34")
    o(f"v_lshl_add_u32 v{V_BA}, v34, 5, v39")
    o(f"v_xor_b32 v{V_BA+1}, 32, v{V_BA}")
    o("v_lshlrev_b32 v39, 6, v38")
    o("v_lshl_add_u32 v39, v37, 13, v39")
    o("v_lshl_add_u32 v39, v36, 3, v39")
    o(f"v_xor_b32 v34, s{S_NG}, v37")
    o(f"v_lshl_add_u32 v{V_B2A}, v34, 5, v39")
    o(f"v_lshlrev_b32 v{V_ST}, 4, v0")
    o("v_bfe_u32 v34, v0, 2, 1")
    o("v_bfe_u32 v35, v0, 3, 1")
    o("v_lshl_or_b32 v34, v34, 1, v35")
    o("v_and_b32 v35, 3, v0")
    o("v_lshl_add_u32 v34, v34, 2, v35")
    o("v_lshl_add_u32 v35, v37, 4, v34")
    o(f"v_lshlrev_b32 v{V_WE}, 3, v35")
    o(f"v_mul_u32_u24 v{V_SV}, {V_P}, v33")
    o(f"v_lshl_add_u32 v{V_SV}, v35, 4, v{V_SV}")
    o(f"v_mul_u32_u24 v{V_WE+1}, {1536*8}, v37")
    o(f"v_lshl_add_u32 v{V_WE+1}, v34, 3, v{V_WE+1}")
    o(f"s_lshl_b32 s{S_RB}, s{S_M}, 7")
    o(f"s_lshl_b32 s{S_A}, s{S_MG}, 6")
    o(f"s_add_u32 s{S_RB}, s{S_RB}, s{S_A}")
    o(f"v_mov_b32 v{V_WE+8}, v{V_WE}")
    o(f"v_mov_b32 v{V_WE+9}, v{V_WE+1}")
    o(f"s_lshl_b32 s{S_FL}, s{S_M}, 4")
    o(f"s_add_u32 s{S_FL}, s{S_FL}, s{S_N}")
    o(f"s_lshl_b32 s{S_FL}, s{S_FL}, 7")
    o(f"s_add_u32 s{S_FL}, s{S_FL}, {OFF_F23}")
    return L

def singles_vm(L):
    G = []; cur = []
    for x in L:
        cur.append(x)
        if isinstance(x, Ins) and x.kind == "vm":
            G.append(cur); cur = []
    assert not cur
    return G

def w2_touch_ops():
    L = ["v_mul_u32_u24 v1, 43, v0", "v_lshrrev_b32 v1, 8, v1",
         "v_mul_u32_u24 v2, 6, v1", "v_sub_u32 v2, v0, v2",
         "v_mul_u32_u24 v1, 1280, v1", "v_lshl_add_u32 v1, v2, 7, v1",
         f"s_lshr_b32 s{S_B}, s2, 3", f"s_lshl_b32 s{S_B}, s{S_B}, 2", f"s_add_u32 s{S_B}, s{S_B}, s{S_WAVE}",
         f"s_and_b32 s{S_CSB}, s2, 1", f"s_mul_i32 s{S_CSB}, s{S_CSB}, 640"]
    L += [f"s_mul_i32 s{S_A}, s{S_B}, {12*1280}", f"s_add_u32 s{S_A}, s{S_A}, s{S_CSB}",
          vm(f"buffer_load_dword v12, v1, s[{SRD_WD}:{SRD_WD+3}], s{S_A} offen", "touch"),
          vm(f"buffer_load_dword v12, v1, s[{SRD_WD}:{SRD_WD+3}], s{S_A} offen offset:2560", "touch"),
          f"s_mul_i32 s{S_A}, s{S_B}, {5*1280}", f"s_add_u32 s{S_A}, s{S_A}, s{S_CSB}",
          vm(f"buffer_load_dword v12, v1, s[{SRD_WO}:{SRD_WO+3}], s{S_A} offen", "touch")]
    return L

def fill_ops(f):
    slot = (f % NSLOT) * SLOT
    G = []
    for q in range(4):
        if f < 20 and f % 2 == 0:
            s = f // 2
            so = q*32*1280 + 128*s; lds = slot + q*4096
            G.append([f"s_add_u32 m0, s{S_LW}, {lds}", f"s_add_u32 s{S_F}, s{S_XB}, {so}",
                      vm(f"buffer_load_dwordx4 v{V_XV}, s[{SRD_X}:{SRD_X+3}], s{S_F} offen lds", ("fill", f))])
        elif f < 20:
            s = f // 2
            so = (64*s + 16*q)*3840; lds = slot + q*4096
            G.append([f"s_add_u32 m0, s{S_LW}, {lds}", f"s_add_u32 s{S_F}, s{S_WB}, {so}",
                      vm(f"buffer_load_dwordx4 v{V_WV}, s[{SRD_WQKV}:{SRD_WQKV+3}], s{S_F} offen lds", ("fill", f))])
        elif f < 30:
            s = f - 20; mat = q >> 1; hf = q & 1
            so = (64*s + 32*hf)*3072; lds = slot + mat*8192 + hf*4096
            v = V_UV if mat else V_GV; sd = SRD_WU if mat else SRD_WG
            G.append([f"s_add_u32 m0, s{S_LW}, {lds}", f"s_add_u32 s{S_F}, s{S_GB}, {so}",
                      vm(f"buffer_load_dwordx4 v{v}, s[{sd}:{sd+3}], s{S_F} offen lds", ("fill", f))])
        else:
            s = f - 30; mat = q >> 1; hf = q & 1
            so = (128*s + 64*hf)*3072; lds = slot + mat*8192 + hf*4096
            v = V_U2 if mat else V_G2; sd = SRD_WU if mat else SRD_WG
            G.append([f"s_add_u32 m0, s{S_LW}, {lds}", f"s_add_u32 s{S_F}, s{S_G2B}, {so}",
                      vm(f"buffer_load_dwordx4 v{v}, s[{sd}:{sd+3}], s{S_F} offen lds", ("fill", f))])
    return G

def epoch_fills(e):
    return [2*e, 2*e+1] if e < 10 else [10 + e]

BLKS = [("A", 0), ("A", 1), ("B1", 0), ("B1", 1), ("B2", 0)]
def stat_load_ops(part, CT, raw=False):
    mk = (lambda t, tag: Ins("    " + t, "raw")) if raw else vm
    L = []
    if part == 0:
        L += [f"v_and_b32 v{CT+39}, 31, v0", f"v_lshlrev_b32 v{CT+39}, 4, v{CT+39}", f"s_lshl_b32 s{S_B}, s{S_RB}, 4"]
        for mb in range(2):
            L.append(mk(f"buffer_load_dwordx4 v[{CT+30+2+4*mb-2}:{CT+33+4*mb}], v{CT+39}, {WS}, s{S_B} offen offset:{512*mb} sc1", "stl"))
    blks = BLKS[:2] if part == 0 else BLKS[2:]
    for bi, (kind, j) in enumerate(blks):
        if kind == "A":
            if j == 0:
                L += [f"s_min_u32 s{S_CSB}, s{S_N}, 14", f"s_lshl_b32 s{S_CSB}, s{S_CSB}, 10", f"s_lshl_b32 s{S_B}, s{S_NG}, 9",
                      f"s_add_u32 s{S_CSB}, s{S_CSB}, s{S_B}", f"s_add_u32 s{S_CSB}, s{S_CSB}, {OFF_CS}"]
            v, off = V_WE + 8, 256*j
        elif kind == "B1":
            if j == 0:
                L += [f"s_mul_i32 s{S_CSB}, s{S_N}, {96*8}", f"s_lshl_b32 s{S_B}, s{S_NG}, 8", f"s_add_u32 s{S_CSB}, s{S_CSB}, s{S_B}",
                      f"s_lshl_b32 s{S_B}, s{S_ODD}, 8", f"s_add_u32 s{S_CSB}, s{S_CSB}, s{S_B}", f"s_add_u32 s{S_CSB}, s{S_CSB}, {OFF_CS + 1920*8}"]
            v, off = V_WE + 9, 128*j
        else:
            L += [f"s_mul_i32 s{S_CSB}, s{S_N}, {96*8}", f"s_lshl_b32 s{S_B}, s{S_NG}, 7", f"s_add_u32 s{S_CSB}, s{S_CSB}, s{S_B}",
                  f"s_lshl_b32 s{S_B}, s{S_ODD}, 9", f"s_sub_u32 s{S_CSB}, s{S_CSB}, s{S_B}", f"s_add_u32 s{S_CSB}, s{S_CSB}, {OFF_CS + 1920*8 + 512}"]
            v, off = V_WE + 9, 0
        for p in range(5):
            r = CT + (bi*5 + p)*2
            L.append(f"s_add_u32 s{S_B}, s{S_CSB}, {p*4992*8}")
            L.append(mk(f"buffer_load_dwordx2 v[{r}:{r+1}], v{v}, {WS}, s{S_B} offen offset:{off} sc1", "stl"))
    return L
def stat_check_ops(part, CT):
    u = uid()
    acc = CT + 38
    nb = 2 if part == 0 else 3
    tags = [CT + 2*k + 1 for k in range(5*nb)]
    chk = [f"v_xor_b32 v{acc}, s{S_NLO}, v{tags[0]}"]
    for r in tags[1:] + ([CT+32, CT+36] if part == 0 else []):
        chk.append(f"v_bitop3_b32 v{acc}, v{acc}, v{r}, s{S_NLO} bitop3:0xf6")
    if part == 0:
        for r in (CT+33, CT+37): chk.append(f"v_bitop3_b32 v{acc}, v{acc}, v{r}, s{S_NHI} bitop3:0xf6")
    fin = [f"v_cmp_ne_u32 vcc, 0, v{acc}", "s_nop 0", "s_and_b64 vcc, vcc, exec"]
    slow = [f"s_cbranch_scc0 L_sok{u}", f"s_mov_b32 s{S_SPIN}, 0x40000", Ins(f"L_sl{u}:", "label"), "s_sleep 2"] + stat_load_ops(part, CT, raw=True) + \
           [Ins("    s_waitcnt vmcnt(0)", "raw")] + chk + fin + [f"s_cbranch_scc0 L_sok{u}", f"s_sub_u32 s{S_SPIN}, s{S_SPIN}, 1", f"s_cbranch_scc0 L_sl{u}", Ins(f"L_sok{u}:", "label")]
    return [wait_vm("stl")] + chk, ("atomic", fin + slow)
def stat_finish_ops(part, CT):
    qs = f2u(20**-0.5 * LOG2E)
    L = []
    if part == 0:
        L = [["v_cmp_gt_u32 vcc, 32, v0", f"s_cmp_lt_u32 s{S_N}, 5", f"s_cselect_b32 s{S_B}, {qs}, 1.0"] +
             [f"v_cndmask_b32 v{V_XE+2*mb}, 0, v{CT+30+4*mb}, vcc" for mb in range(2)] +
             [f"v_mul_f32 v{V_R2+mb}, s{S_B}, v{CT+31+4*mb}" for mb in range(2)]]
        for mb in range(2):
            L.append(f"v_and_b32 v{V_XE+2*mb+1}, 0xffff, v{V_XE+2*mb}")
            L.append(f"v_mov_b32 v{V_R+mb}, v{CT+31+4*mb}")
    for bi in range(2 if part == 0 else 3):
        t = CT + bi*10; w = V_WE + 2*(bi + 2*part)
        L += [f"v_add_f32 v{t}, v{t}, v{t+2}", f"v_add_f32 v{t+4}, v{t+4}, v{t+6}", f"v_add_f32 v{t}, v{t}, v{t+8}", f"v_add_f32 v{t}, v{t}, v{t+4}",
              f"v_cvt_pk_bf16_f32 v{t+1}, v{t}, v{t}", f"v_and_b32 v{t+1}, 0xffff0000, v{t+1}", f"v_sub_f32 v{t+1}, v{t}, v{t+1}",
              f"v_cvt_pk_bf16_f32 v{w}, v{t}, v{t+1}", f"v_and_b32 v{t+2}, 0xffff0000, v{w}", f"v_sub_f32 v{t+1}, v{t+1}, v{t+2}",
              f"v_cvt_pk_bf16_f32 v{w+1}, v{t+1}, 0"]
    return L

def epi_T_ops(acc, j, mb, sc=""):
    L = []
    for r in range(16):
        L.append(f"v_mul_f32 v{acc+r}, v{acc+r}, v{V_R2+mb}")
    for ap in range(2):
        b = acc + 8*ap
        for k in range(4):
            L.append(f"v_cvt_pk_bf16_f32 v{b+k}, v{b+2*k}, v{b+2*k+1}")
        if ap == 0: L.append(f"s_add_u32 s{S_B}, s{S_STQ}, {mb*QK_RB}")
        L.append(vm(f"buffer_store_dwordx4 v[{b}:{b+3}], v{V_ST}, s[{SRD_WS}:{SRD_WS+3}], s{S_B} offen offset:{(4*j + 2*ap)*512}{sc}", "st"))
    return L

LDS_SCR = 9 * 16384
def epi_V_ops(sc=""):
    Q = [8, 36]
    L = []
    L.append(f"s_lshl_b32 s{S_CSB}, s{S_WAVE}, 8")
    L.append(f"s_add_u32 s{S_CSB}, s{S_CSB}, {LDS_SCR}")
    L.append(f"v_and_b32 v2, 31, v0")
    L.append(f"v_lshl_add_u32 v2, v2, 2, s{S_CSB}")
    L.append(ds(f"ds_write_b32 v2, v{V_R}", None))
    L.append(ds(f"ds_write_b32 v2, v{V_R+1} offset:128", None))
    L.append(f"v_lshrrev_b32 v1, 5, v0")
    L.append(f"v_lshl_add_u32 v1, v1, 4, s{S_CSB}")
    items = [(mb, a_) for mb in range(2) for a_ in range(4)]
    def ld(i):
        mb, a_ = items[i]
        return ds(f"ds_read_b128 v[{Q[i%2]}:{Q[i%2]+3}], v1 offset:{128*mb + 32*a_}", ("r16", i))
    L += [ld(0), ld(1)]
    for i, (mb, a_) in enumerate(items):
        q = Q[i % 2]
        L.append(wait_ds(("r16", i)))
        for j in range(2):
            acc = ACC0 + (j*2 + mb)*16
            for b in range(4):
                L.append(f"v_mul_f32 v{acc+4*a_+b}, v{acc+4*a_+b}, v{q+b}")
        if i + 2 < len(items): L.append(ld(i+2))
        if a_ % 2 == 1:
            t = a_ // 2
            L.append(f"s_add_u32 s{S_B}, s{S_STQ}, {(mb*4 + t*2)*V_P}")
            for j in range(2):
                b0 = ACC0 + (j*2 + mb)*16 + 8*t
                for k in range(4):
                    L.append(f"v_cvt_pk_bf16_f32 v{b0+k}, v{b0+2*k}, v{b0+2*k+1}")
                L.append(vm(f"buffer_store_dwordx4 v[{b0}:{b0+3}], v{V_SV}, s[{SRD_WS}:{SRD_WS+3}], s{S_B} offen offset:{512*j}{sc}", "st"))
    for r in range(4): L.append(f"v_mov_b32 v{8+r}, 0x3f803f80")
    L.append(f"v_and_b32 v2, 7, v0")
    L.append(f"v_mul_u32_u24 v2, {V_P}, v2")
    L.append(f"s_lshr_b32 s{S_B}, s{S_RB}, 5")
    L.append(f"s_mul_i32 s{S_B}, s{S_B}, {4*V_P}")
    L.append(f"s_add_u32 s{S_B}, s{S_B}, {OFF_V + 640*16}")
    L.append(vm(f"buffer_store_dwordx4 v[8:11], v2, s[{SRD_WS}:{SRD_WS+3}], s{S_B} offen{sc}", "st"))
    return L

def epi_glu_ops(acc, chunk_off, mb, sc=""):
    L = []
    for grp in range(2):
        rs = range(4*grp, 4*grp+4)
        for r in rs: L.append(f"v_mul_f32 v{acc+r}, v{acc+r}, v{V_R2+mb}")
        for r in rs: L.append(f"v_exp_f32 v{acc+r}, v{acc+r}")
        for r in rs: L.append(f"v_mul_f32 v{acc+8+r}, v{acc+8+r}, v{V_R+mb}")
        for r in rs: L.append(f"v_add_f32 v{acc+r}, 1.0, v{acc+r}")
        for r in rs: L.append(f"v_rcp_f32 v{acc+r}, v{acc+r}")
        L.append("s_nop 0")
        for r in rs: L.append(f"v_mul_f32 v{acc+r}, v{acc+r}, v{acc+8+r}")
    for k in range(4):
        L.append(f"v_cvt_pk_bf16_f32 v{acc+k}, v{acc+2*k}, v{acc+2*k+1}")
    L.append(f"s_add_u32 s{S_B}, s{S_STH}, {mb*ACT_RB + chunk_off*512}")
    L.append(vm(f"buffer_store_dwordx4 v[{acc}:{acc+3}], v{V_ST}, s[{SRD_WS}:{SRD_WS+3}], s{S_B} offen{sc}", "st"))
    return L


GAP_BUDGET = 24
def gemm1_body(a, variant):
    sc = SC
    steps = []
    for t in range(40): steps.append(dict(p="A", t=t, e=t//4, ks=t % 4, nb=2))
    for t in range(40): steps.append(dict(p="B1", t=t, e=10 + t//4, ks=t % 4, nb=2))
    for t in range(40): steps.append(dict(p="B2", t=t, e=20 + t//8, ks=t % 8, nb=1))
    frags = []
    for si, s in enumerate(steps):
        for j in range(s["nb"]): frags.append((si, j))
    fr_index = {f: k for k, f in enumerate(frags)}
    cur_base = {}
    def rebase(reg, slot_off):
        cur = cur_base.get(reg, 0)
        if cur == slot_off: return []
        cur_base[reg] = slot_off
        return [f"v_add_u32 v{reg}, {hex((slot_off - cur) & 0xffffffff)}, v{reg}"]
    def frag_read(k):
        si, j = frags[k]; s = steps[si]
        q = V_WF + (k % 6)*4
        f = epoch_fills(s["e"])[-1]
        slot = (f % NSLOT)*SLOT
        if s["p"] == "A":   reg, o1, o2 = V_WA + j, s["ks"]*4096, 1024
        elif s["p"] == "B1": reg, o1, o2 = V_BA + j, s["ks"]*2048, 512
        else:               reg, o1, o2 = V_B2A, s["ks"]*1024, 256
        return rebase(reg, slot) + [ds(f"ds_read_b64_tr_b16 v[{q}:{q+1}], v{reg} offset:{o1}", None),
                                    ds(f"ds_read_b64_tr_b16 v[{q+2}:{q+3}], v{reg} offset:{o1+o2}", ("wf", k))]
    def x_reads(e):
        slot = ((2*e) % NSLOT)*SLOT
        L = []
        for ks in range(4):
            g = rebase(V_XA + ks, slot)
            for mb in range(2):
                g = g + [ds(f"ds_read_b128 {xfrag(4*e+ks, mb)}, v{V_XA+ks} offset:{mb*4096}", ("xf", 4*e+ks, mb))]
                L.append(g); g = []
        return L
    bg, xq, dq = [], [], []
    push = bg.extend
    avail_epoch = 0
    next_frag = 0
    a.add(wait_vm(("fill", 1)))
    a.op("s_barrier")
    stamp(a, 2)
    for g in x_reads(0): a.add(g)
    while next_frag < 6:
        a.add(frag_read(next_frag)); next_frag += 1
    done_frag = -1
    def accreg(p, j, mb):
        if p == "A": return ACC0 + (j*2 + mb)*16
        if p == "B1": return ACC1 + (j*2 + mb)*16
        return ACC0 + mb*16
    gap_no = 0; last_dma = -10
    VP = V_TMP
    flag_at = {}
    for si, s in enumerate(steps):
        p, t, e, ks = s["p"], s["t"], s["e"], s["ks"]
        barrier_here = (ks == (1 if p != "B2" else 2)) and e + 1 < 25
        SE = {2: 3, 5: 4, 8: 5, 10: 6, 12: 7, 14: 8, 17: 9, 20: 10, 22: 11, 24: 12}
        if ks == 0 and e in SE: stamp(a, SE[e])
        if p == "A" and t == 21: push(singles(stat_load_ops(0, ACC1)))
        if p == "A" and t == 31:
            c1, c2 = stat_check_ops(0, ACC1)
            push(singles(c1)); push([c2]); push(singles(stat_finish_ops(0, ACC1)))
        if p == "B1" and t == 30:
            c1, c2 = stat_check_ops(1, ACC0)
            push(singles(c1)); push([c2]); push(singles(stat_finish_ops(1, ACC0)))
        if p == "B1" and t == 1:
            if variant == "T":
                pre = [f"s_lshl_b32 s{S_STQ}, s{S_N}, 13", f"s_lshl_b32 s{S_B}, s{S_NG}, 12", f"s_add_u32 s{S_STQ}, s{S_STQ}, s{S_B}",
                       f"s_lshr_b32 s{S_B}, s{S_RB}, 5", f"s_mul_i32 s{S_B}, s{S_B}, {QK_RB}", f"s_add_u32 s{S_STQ}, s{S_STQ}, s{S_B}",
                       f"s_add_u32 s{S_STQ}, s{S_STQ}, {OFF_QK}"]
                push(singles(pre))
                for j in range(2):
                    for mb in range(2):
                        push(singles(epi_T_ops(accreg("A", j, mb), j, mb, sc)))
            else:
                pre = [f"s_lshr_b32 s{S_STQ}, s{S_RB}, 5", f"s_mul_i32 s{S_STQ}, s{S_STQ}, {4*V_P}",
                       f"s_sub_u32 s{S_B}, s{S_N}, 10", f"s_lshl_b32 s{S_B}, s{S_B}, 11", f"s_add_u32 s{S_STQ}, s{S_STQ}, s{S_B}",
                       f"s_lshl_b32 s{S_B}, s{S_NG}, 10", f"s_add_u32 s{S_STQ}, s{S_STQ}, s{S_B}",
                       f"s_add_u32 s{S_STQ}, s{S_STQ}, {OFF_V}"]
                push(singles(pre))
                push([[f"s_cmp_eq_u32 s{S_N}, 15", f"s_cselect_b32 s{S_STQ}, 0x7f000000, s{S_STQ}"]])
                push(singles(epi_V_ops(sc)))
            push([("mark", "epiA_done")])
            push(singles(stat_load_ops(1, ACC0)))
            nl = f2u(-LOG2E)
            push(singles([f"v_mul_f32 v{V_R2}, {hex(nl)}, v{V_R}", f"v_mul_f32 v{V_R2+1}, {hex(nl)}, v{V_R+1}"]))
            push(singles([f"s_mul_i32 s{S_STH}, s{S_N}, {12*512}", f"s_lshr_b32 s{S_B}, s{S_RB}, 5", f"s_mul_i32 s{S_B}, s{S_B}, {ACT_RB}",
                   f"s_add_u32 s{S_STH}, s{S_STH}, s{S_B}", f"s_add_u32 s{S_STH}, s{S_STH}, {OFF_ACT}"]))
        if p == "B1" and t == 26:
            push(singles(w2_touch_ops()))
        if p == "B1" and t == 33:
            push(singles(p_attn.early_setup_ops()))
        if p == "B2" and t == 2:
            push([poll_issue_ops(VP, p_attn.V_PA, "poll2")])
            push(singles([f"s_add_u32 s{S_B}, s{S_NG}, s{S_ODD}", f"s_lshl_b32 s{S_B}, s{S_B}, 11", f"s_add_u32 s{S_STH}, s{S_STH}, s{S_B}"]))
            for j in range(2):
                for mb in range(2):
                    push(singles(epi_glu_ops(accreg("B1", j, mb), 2*j, mb, sc)))
                if j == 0:
                    push([("atomic", poll_check_ops(2, VP, p_attn.V_PA, "poll2"))])
                    push([("mark", "qkv_ok")])
            push(singles([f"s_lshl_b32 s{S_B}, s{S_NG}, 10", f"s_sub_u32 s{S_STH}, s{S_STH}, s{S_B}",
                          f"s_mul_i32 s{S_B}, s{S_ODD}, {12*512}", f"s_sub_u32 s{S_STH}, s{S_STH}, s{S_B}"]))
        mi = 0
        for j in range(s["nb"]):
            k = fr_index[(si, j)]
            q = V_WF + (k % 6)*4
            for mb in range(2):
                a.add(wait_ds(("wf", k)))
                if p == "A": a.add(wait_ds(("xf", t, mb)))
                acc = accreg(p, j, mb)
                c = "0" if t == 0 else vr(acc, 16)
                if p == "A" and variant == "V":
                    a.op(f"v_mfma_f32_32x32x16_bf16 {vr(acc,16)}, {xfrag(t, mb)}, {vr(q,4)}, {c}")
                else:
                    a.op(f"v_mfma_f32_32x32x16_bf16 {vr(acc,16)}, {vr(q,4)}, {xfrag(t, mb)}, {c}")
                gap_no += 1
                used = 2
                if barrier_here and mi == 0:
                    assert not xq, (p, t, len(xq))
                    for f in epoch_fills(e+1):
                        assert not any(("fill", f) == x.tag for g in dq for x in g if isinstance(x, Ins)), f"fill {f} not issued yet"
                        a.add(wait_vm(("fill", f)))
                    if e in flag_at: a.add(wait_vm(flag_at[e][1]))
                    a.op("s_barrier")
                    used += 8
                    if e in flag_at:
                        g = flag_set_ops(flag_at[e][0], VP, S_FL); a.add(g); used += cost(g)
                    avail_epoch = e + 1
                    if e + 1 < 10: xq += x_reads(e+1)
                    if e >= 1:
                        for f in epoch_fills(e-1):
                            if f + NSLOT < 35: dq += fill_ops(f + NSLOT)
                if mb == 1: done_frag = k
                while next_frag < len(frags) and next_frag - 6 <= done_frag and steps[frags[next_frag][0]]["e"] <= avail_epoch and used < GAP_BUDGET:
                    g = frag_read(next_frag); a.add(g); used += cost(g); next_frag += 1
                if xq and used < GAP_BUDGET:
                    g = xq.pop(0); a.add(g); used += cost(g)
                if dq and gap_no - last_dma >= (2 if p != "B2" else 1) and used <= GAP_BUDGET - 12:
                    g = dq.pop(0); a.add(g); used += cost(g); last_dma = gap_no
                while bg and used < GAP_BUDGET:
                    g = bg[0]
                    if isinstance(g, tuple) and g[0] == "atomic":
                        bg.pop(0); a.add(g[1]); used += 16
                        continue
                    if isinstance(g, tuple):
                        bg.pop(0)
                        if g[1] == "epiA_done":
                            flag_at[e + 3] = (2, "st")
                        if g[1] == "qkv_ok":
                            assert p == "B2"
                            dq += p_attn.early_load_groups(t)
                        continue
                    if used + cost(g) > GAP_BUDGET + 4 and used > 6: break
                    bg.pop(0); a.add(g); used += cost(g)
                mi += 1
        if t == 39:
            while xq: a.add(xq.pop(0))
            while bg:
                g = bg.pop(0)
                if isinstance(g, tuple):
                    assert g[0] == "atomic", g
                    g = g[1]
                a.add(g)
            a.op("s_nop 1")
            for j in range(s["nb"]):
                for mb in range(2):
                    acc = accreg(p, j, mb)
                    we = V_WE + 2*BLKS.index((p, j))
                    if p == "A" and variant == "V":
                        a.op(f"v_mfma_f32_32x32x8_bf16 {vr(acc,16)}, {vr(V_XE+2*mb,2)}, {vr(we,2)}, {vr(acc,16)}")
                    else:
                        a.op(f"v_mfma_f32_32x32x8_bf16 {vr(acc,16)}, {vr(we,2)}, {vr(V_XE+2*mb,2)}, {vr(acc,16)}")
    stamp(a, 13)
    while dq: a.add(dq.pop(0))
    a.add(p_attn.late_load_ops())
    for mb in range(2):
        a.add(epi_glu_ops(accreg("B2", 0, mb), 8, mb, sc))
    assert max(flag_at) < 20 and len(flag_at) == 1, flag_at
```

```python
from common import *
V_WV = 184
V_AV = 190
V_RA = 191
V_XO = 8
V_RED = 9
V_X = 10
V_WF = 24
V_ACC = 64
A_AF = 128
NAB = 6
NWB = 6
WSTEP = 6144
S_MT, S_NT, S_A, S_B, S_AB, S_WDB, S_WOB, S_LB = 16, 17, 18, 19, 20, 21, 22, 23
S_XO = 3
S_LM = 66
NK = 17

def setup_ops():
    L = []; o = L.append
    o(f"s_bfe_u32 s{S_A}, s2, 0x20001")
    o(f"s_lshl_b32 s{S_A}, s{S_A}, 3")
    o(f"s_bfe_u32 s{S_B}, s2, 0x30003")
    o(f"s_add_u32 s{S_MT}, s{S_A}, s{S_B}")
    o(f"s_and_b32 s{S_A}, s2, 1")
    o(f"s_lshl_b32 s{S_A}, s{S_A}, 2")
    o(f"s_lshr_b32 s{S_B}, s2, 6")
    o(f"s_add_u32 s{S_NT}, s{S_A}, s{S_B}")
    for i in range(6):
        o(f"v_add_u32 v12, {64*i}, v0")
        o(f"v_mul_u32_u24 v13, 5462, v12")
        o(f"v_lshrrev_b32 v13, 16, v13")
        o(f"v_mul_u32_u24 v14, {1280 - 192}, v13")
        o(f"v_lshl_add_u32 v{V_WV+i}, v12, 4, v14")
    o(f"s_mul_i32 s{S_A}, s{S_NT}, 160")
    o(f"s_and_b32 s{S_A}, s{S_A}, {hex(0xffffffc0)}")
    o(f"s_mul_i32 s{S_WDB}, s{S_WAVE}, {12*32*1280}")
    o(f"s_add_u32 s{S_WDB}, s{S_WDB}, s{S_A}")
    o(f"s_mul_i32 s{S_WOB}, s{S_WAVE}, {5*32*1280}")
    o(f"s_add_u32 s{S_WOB}, s{S_WOB}, s{S_A}")
    o(f"s_mul_i32 s{S_LB}, s{S_WAVE}, {NWB*WSTEP}")
    o("v_and_b32 v12, 15, v0")
    o("v_lshrrev_b32 v13, 4, v0")
    o(f"v_lshlrev_b32 v{V_AV}, 9, v13")
    o(f"v_lshl_add_u32 v{V_AV}, v12, 4, v{V_AV}")
    o(f"s_mul_i32 s{S_AB}, s{S_MT}, {2*ACT_RB}")
    o(f"s_add_u32 s{S_AB}, s{S_AB}, {OFF_ACT}")
    o("v_bfe_u32 v14, v0, 2, 2")
    o("v_lshl_add_u32 v14, v13, 3, v14")
    o(f"v_mul_u32_u24 v{V_RA}, 192, v14")
    o("v_and_b32 v14, 3, v0")
    o(f"v_lshl_add_u32 v{V_RA}, v14, 3, v{V_RA}")
    o(f"s_and_b32 s{S_A}, s{S_NT}, 1")
    o(f"s_lshl_b32 s{S_A}, s{S_A}, 5")
    o(f"s_add_u32 s{S_A}, s{S_A}, s{S_LB}")
    o(f"v_add_u32 v{V_RA}, s{S_A}, v{V_RA}")
    o(f"s_lshr_b32 s{S_A}, s{S_MT}, 1")
    o(f"s_lshl_b32 s{S_A}, s{S_A}, 11")
    o(f"s_add_u32 s{S_A}, s{S_A}, {OFF_F23}")
    o(f"v_lshl_add_u32 v15, v12, 7, s{S_A}")
    return L

def w_fill(k):
    G = []
    lds = (k % NWB)*WSTEP
    for i in range(6):
        if k < 12: so, base, sd = k*32*1280, S_WDB, SRD_WD
        else:      so, base, sd = (k-12)*32*1280, S_WOB, SRD_WO
        G.append([f"s_add_u32 m0, s{S_LB}, {lds + i*1024}", f"s_add_u32 s{S_A}, s{base}, {so}",
                  vm(f"buffer_load_dwordx4 v{V_WV+i}, s[{sd}:{sd+3}], s{S_A} offen lds", ("wfill", k))])
    return G

def a_load(k):
    G = []
    for mb in range(4):
        g = []
        if mb % 2 == 0:
            ch = 4*k if k < 12 else 192 + 4*(k-12)
            g.append(f"s_mul_i32 s{S_B}, s{S_WAVE}, {(48 if k < 12 else 20)*512}")
            g.append(f"s_add_u32 s{S_B}, s{S_B}, {ch*512 + (mb >> 1)*ACT_RB}")
            g.append(f"s_add_u32 s{S_B}, s{S_B}, s{S_AB}")
        r = A_AF + ((k % NAB)*4 + mb)*4
        g.append(vm(f"buffer_load_dwordx4 {ar(r,4)}, v{V_AV}, {WS}, s{S_B} offen offset:{256*(mb & 1)}{LSC}", ("af", k)))
        G.append(g)
    return G

def w_reads(k):
    G = []
    lds = (k % NWB)*WSTEP
    for nb in range(5):
        q = V_WF + ((k % 2)*5 + nb)*4
        G.append([ds(f"ds_read_b64_tr_b16 v[{q}:{q+1}], v{V_RA} offset:{lds + 32*nb}", None),
                  ds(f"ds_read_b64_tr_b16 v[{q+2}:{q+3}], v{V_RA} offset:{lds + 32*nb + 768}", ("wr", k, nb))])
    return G

def gemm2_main(a, w_done, a_done):
    a.add(wait_vm(("wfill", 0)))
    for g in w_reads(0): a.add(g)
    a.op("v_and_b32 v20, 15, v0")
    a.op("v_lshrrev_b32 v21, 4, v0")
    a.op(f"v_mul_u32_u24 v{V_XO}, 1280, v20")
    a.op(f"v_lshl_add_u32 v{V_XO}, v21, 3, v{V_XO}")
    a.op(f"s_lshl_b32 s{S_A}, s{S_MT}, 2")
    a.op(f"s_add_u32 s{S_A}, s{S_A}, s{S_WAVE}")
    a.op(f"s_mul_i32 s{S_A}, s{S_A}, {16*1280}")
    a.op(f"s_mul_i32 s{S_B}, s{S_NT}, 160")
    a.op(f"s_add_u32 s{S_XO}, s{S_A}, s{S_B}")
    a.op(f"s_lshl_b32 s{S_A}, s{S_MT}, 10")
    a.op(f"s_add_u32 s{S_A}, s{S_A}, {OFF_F4}")
    a.op("v_and_b32 v20, 7, v0")
    a.op(f"v_lshl_add_u32 v7, v20, 7, s{S_A}")
    a.op(f"s_lshl_b32 s{S_LM}, s2, 7")
    a.op(f"s_add_u32 s{S_LM}, s{S_LM}, {OFF_F4}")
    for k in range(a_done, NAB - 1):
        for g in a_load(k): a.add(g)
    a_next = max(a_done, NAB - 1); w_next = w_done
    for k in range(NK):
        bg = []
        if k == 1:
            bg.append([wait_vm("ost"), "s_barrier"] + flag_set_ops(4, 20, S_LM))
        if k + 1 < NK:
            rd = [[wait_vm(("wfill", k+1))] + w_reads(k+1)[0]] + w_reads(k+1)[1:]
        else: rd = []
        ld = []
        while a_next < NK and a_next <= k - 1 + NAB:
            if a_next == 12:
                ld.append(poll_check_ops(4, 20, 7, "poll4"))
            ld += a_load(a_next); a_next += 1
        while w_next < NK and w_next <= k - 1 + NWB:
            ld += w_fill(w_next); w_next += 1
        if k == 5: ld.append(poll_issue_ops(20, 7, "poll4"))
        if k == 14:
            for nb in range(5):
                ld.append([vm(f"buffer_load_dwordx2 {vr(V_X+2*nb,2)}, v{V_XO}, s[{SRD_X}:{SRD_X+3}], s{S_XO} offen offset:{32*nb}", "xres")])
        seq = bg + ld
        a.add(wait_vm(("af", k)))
        if k == 1: stamp(a, 3)
        if k == 9: stamp(a, 4)
        n = 0
        for nb in range(5):
            q = V_WF + ((k % 2)*5 + nb)*4
            a.add(wait_ds(("wr", k, nb)))
            for mb in range(4):
                acc = V_ACC + (mb*5 + nb)*4
                c = "0" if k == 0 else vr(acc, 4)
                r = A_AF + ((k % NAB)*4 + mb)*4
                a.op(f"v_mfma_f32_16x16x32_bf16 {vr(acc,4)}, {vr(q,4)}, {ar(r,4)}, {c}")
                n += 1
                if seq and (n % 2 == 1 or len(seq) + len(rd) > (20 - n)//2): a.add(seq.pop(0))
                elif not seq and rd and n >= 8: a.add(rd.pop(0))
        while seq: a.add(seq.pop(0))
        while rd: a.add(rd.pop(0))
    stamp(a, 5)
    assert (NK-1) % NWB == 4
    a.op(f"v_lshlrev_b32 v{V_RED}, 4, v0")
    a.op(f"v_add_u32 v20, s{S_LB}, v{V_RED}")
    for d in range(4):
        for nb in range(5):
            acc = V_ACC + (d*5 + nb)*4
            a.add(ds(f"ds_write_b128 v20, {vr(acc,4)} offset:{(d*5 + nb)*1024}", "redw"))
    a.op(f"s_mul_i32 s{S_A}, s{S_WAVE}, {5*1024}")
    a.op(f"v_add_u32 v{V_RED}, s{S_A}, v{V_RED}")
    a.add(wait_vm("xres"))
    for nb in range(5):
        a.op(f"v_lshlrev_b32 v{24+4*nb}, 16, v{V_X+2*nb}")
        a.op(f"v_and_b32 v{25+4*nb}, 0xffff0000, v{V_X+2*nb}")
        a.op(f"v_lshlrev_b32 v{26+4*nb}, 16, v{V_X+2*nb+1}")
        a.op(f"v_and_b32 v{27+4*nb}, 0xffff0000, v{V_X+2*nb+1}")
    a.op(f"v_add_u32 v21, {2*NWB*WSTEP}, v{V_RED}")
    a.op("s_waitcnt lgkmcnt(0)")
    a.op("s_barrier")
    for nb in range(5):
        for s in range(4):
            reg, off = (V_RED, s*NWB*WSTEP) if s < 2 else (21, (s-2)*NWB*WSTEP)
            a.add(ds(f"ds_read_b128 {vr(64 + (nb*4+s)*4, 4)}, v{reg} offset:{off + nb*1024}", ("red", nb, s)))
    for nb in range(5):
        b = 24 + 4*nb
        for s in range(4):
            a.add(wait_ds(("red", nb, s)))
            for r in range(4):
                a.op(f"v_add_f32 v{b+r}, v{b+r}, v{64+(nb*4+s)*4+r}")
        a.op(f"v_cvt_pk_bf16_f32 v{b}, v{b}, v{b+1}")
        a.op(f"v_cvt_pk_bf16_f32 v{b+1}, v{b+2}, v{b+3}")
        a.add(vm(f"buffer_store_dwordx2 {vr(b,2)}, v{V_XO}, s[{SRD_OUT}:{SRD_OUT+3}], s{S_XO} offen offset:{32*nb}", "st"))
    stamp(a, 6)
```

```python
from common import *
T = 8
R_ROW, R_LO, R_CS, R_ACC = 128, 138, 152, 184
VT = 64
LDS_SCR = 9 * 16384
VN = 80

def dpp_allsum32(v, t):
    L = []
    for mod in ("quad_perm:[1,0,3,2]", "quad_perm:[2,3,0,1]", "row_half_mirror", "row_mirror"):
        L.append(["s_nop 1", f"v_add_f32_dpp v{v}, v{v}, v{v} {mod} row_mask:0xf bank_mask:0xf"])
    L.append([f"v_mov_b32 v{t}, v{v}", "s_nop 1", f"v_permlane16_swap_b32 v{v}, v{t}", "s_nop 1", f"v_add_f32 v{v}, v{v}, v{t}"])
    return L

def pre_addr(a):
    a.op(f"v_lshrrev_b32 v{VT}, 5, v0")
    a.op(f"v_and_b32 v{VT+1}, 31, v0")
    a.op(f"v_mul_u32_u24 v{VT+2}, 1280, v{VT}")
    a.op(f"v_lshl_add_u32 v{VT+2}, v{VT+1}, 3, v{VT+2}")
    a.op(f"s_and_b32 s{T+9}, s2, 1")
    a.op(f"s_bfe_u32 s{T+10}, s2, 0x20001")
    a.op(f"s_lshr_b32 s{T+11}, s2, 3")
    a.op(f"s_lshl_b32 s{T}, s{T+9}, 10")
    a.op(f"s_lshl_b32 s{T+1}, s{T+10}, 8")
    a.op(f"s_add_u32 s{T}, s{T}, s{T+1}")
    a.op(f"s_lshl_b32 s{T+1}, s{T+11}, 3")
    a.op(f"s_add_u32 s{T}, s{T}, s{T+1}")
    a.op(f"s_lshl_b32 s{T+1}, s{S_WAVE}, 1")
    a.op(f"s_add_u32 s{T}, s{T}, s{T+1}")
    a.op(f"s_mul_i32 s{T+1}, s{T}, 1280")
    a.op(f"s_lshl_b32 s{T+9}, s{T+9}, 5")
    a.op(f"s_add_u32 s{T+9}, s{T+9}, s{T+11}")
    a.op(f"s_min_u32 s{T+9}, s{T+9}, 49")
    a.op(f"s_mul_i32 s{T+2}, s{T+9}, 205")
    a.op(f"s_lshr_b32 s{T+2}, s{T+2}, 11")
    a.op(f"s_mul_i32 s{T+3}, s{T+2}, 10")
    a.op(f"s_sub_u32 s{T+3}, s{T+9}, s{T+3}")
    a.op(f"s_mul_i32 s{T+11}, s{T+10}, 3")
    a.op(f"s_add_u32 s{T+11}, s{T+11}, s{T+3}")
    a.op(f"s_sub_u32 s{T+4}, s{T+11}, 7")
    a.op(f"s_sub_u32 s{T+6}, s{T+11}, 4")
    a.op(f"s_cmp_lt_u32 s{T+3}, 7")
    a.op(f"s_cselect_b32 s{T+4}, s{T+6}, s{T+4}")
    a.op(f"s_cselect_b32 s{T+8}, 15, 27")
    a.op(f"s_lshl_b32 s{T+6}, s{T+10}, 2")
    a.op(f"s_add_u32 s{T+6}, s{T+6}, s{T+3}")
    a.op(f"s_min_u32 s{T+6}, s{T+6}, 14")
    a.op(f"s_movk_i32 s{T+5}, 3072")
    a.op(f"s_cmp_lt_u32 s{T+3}, 4")
    a.op(f"s_cselect_b32 s{T+4}, s{T+6}, s{T+4}")
    a.op(f"s_cselect_b32 s{T+8}, 0, s{T+8}")
    a.op(f"s_cselect_b32 s{T+5}, 3840, s{T+5}")
    a.op(f"s_add_u32 s{T+3}, s{T+4}, s{T+8}")
    a.op(f"s_lshl_b32 s{T+4}, s{T+4}, 8")
    a.op(f"s_lshl_b32 s{T+6}, s{T+2}, 7")
    a.op(f"s_lshl_b32 s{T+7}, s{S_WAVE}, 2")
    a.op(f"s_add_u32 s{T+6}, s{T+6}, s{T+7}")
    a.op(f"s_mul_i32 s{T+6}, s{T+6}, s{T+5}")
    a.op(f"s_add_u32 s{T+6}, s{T+6}, s{T+4}")
    a.op(f"s_lshl_b32 s{T+7}, s{T+5}, 4")
    a.op(f"v_lshrrev_b32 v{VT+3}, 4, v0")
    a.op(f"v_and_b32 v{VT+4}, 15, v0")
    a.op(f"v_mul_u32_u24 v{VT+5}, s{T+5}, v{VT+3}")
    a.op(f"v_lshl_add_u32 v{VT+5}, v{VT+4}, 4, v{VT+5}")

def issue_loads(a):
    for j in range(5):
        a.add(vm(f"buffer_load_dwordx2 v[{R_ROW+2*j}:{R_ROW+1+2*j}], v{VT+2}, s[{SRD_X}:{SRD_X+3}], s{T+1} offen offset:{256*j}", "strow"))
    a.op(f"s_cmp_lt_u32 s{T+3}, 27")
    a.op(f"s_cselect_b32 s{SRD_TMP}, s{SRD_WG}, s{SRD_WU}")
    a.op(f"s_cselect_b32 s{SRD_TMP+1}, s{SRD_WG+1}, s{SRD_WU+1}")
    a.op(f"s_cmp_lt_u32 s{T+3}, 15")
    a.op(f"s_cselect_b32 s{SRD_TMP}, s{SRD_WQKV}, s{SRD_TMP}")
    a.op(f"s_cselect_b32 s{SRD_TMP+1}, s{SRD_WQKV+1}, s{SRD_TMP+1}")
    a.op(f"s_mul_i32 s{SRD_TMP+2}, s{T+5}, 640")
    a.op(f"s_mov_b32 s{SRD_TMP+3}, 0x20000")
    for j in range(8):
        a.add(vm(f"buffer_load_dwordx4 v[{R_CS+4*j}:{R_CS+3+4*j}], v{VT+5}, s[{SRD_TMP}:{SRD_TMP+3}], s{T+6} offen", ("stcs", j)))
        if j < 7: a.op(f"s_add_u32 s{T+6}, s{T+6}, s{T+7}")

def compute_groups():
    G = []
    g = G.append
    A, B, W2, M, Vv = VT+6, VT+7, VT+8, VT+12, VT+13
    g([wait_vm("strow")])
    for k in range(10):
        g([f"v_lshlrev_b32 v{R_LO+k}, 16, v{R_ROW+k}", f"v_and_b32 v{R_ROW+k}, 0xffff0000, v{R_ROW+k}"])
    vals = [R_LO+k for k in range(10)] + [R_ROW+k for k in range(10)]
    g([f"v_add_f32 v{M}, v{vals[0]}, v{vals[1]}", f"v_add_f32 v{B}, v{vals[2]}, v{vals[3]}"])
    for k in range(4, 20, 2):
        g([f"v_add_f32 v{M}, v{M}, v{vals[k]}", f"v_add_f32 v{B}, v{B}, v{vals[k+1]}"])
    g([f"v_add_f32 v{M}, v{M}, v{B}"])
    G += dpp_allsum32(M, B)
    g([f"v_mul_f32 v{M}, 0x3acccccd, v{M}", f"v_mov_b32 v{Vv}, 0", f"v_mov_b32 v{W2}, 0"])
    for k in range(0, 20, 2):
        g([f"v_sub_f32 v{vals[k]}, v{vals[k]}, v{M}", f"v_sub_f32 v{vals[k+1]}, v{vals[k+1]}, v{M}"])
        g([f"v_fmac_f32 v{Vv}, v{vals[k]}, v{vals[k]}", f"v_fmac_f32 v{W2}, v{vals[k+1]}, v{vals[k+1]}"])
    g([f"v_add_f32 v{Vv}, v{Vv}, v{W2}"])
    G += dpp_allsum32(Vv, B)
    rnd = lambda v: [f"v_cvt_pk_bf16_f32 v{v}, v{v}, v{v}", f"v_and_b32 v{v}, 0xffff0000, v{v}"]
    g([f"v_mul_f32 v{Vv}, 0x3acccccd, v{Vv}"] + rnd(Vv))
    g([f"v_add_f32 v{Vv}, 0x3727c5ac, v{Vv}"] + rnd(Vv))
    g([f"v_sqrt_f32 v{Vv}, v{Vv}", "s_nop 0"] + rnd(Vv))
    g([f"v_rcp_f32 v{Vv}, v{Vv}", f"v_cvt_pk_bf16_f32 v{M}, -v{M}, -v{M}"])
    g(nonce_get_ops(VN))
    g([f"v_lshlrev_b32 v{A}, 4, v{VT}", f"v_lshl_add_u32 v{A}, v{VT+1}, 25, v{A}", f"s_lshl_b32 s{T+1}, s{T}, 4",
       f"v_mov_b32 v{M+2}, s{S_NLO}", f"v_mov_b32 v{M+3}, s{S_NHI}"])
    g([vm(f"buffer_store_dwordx4 v[{M}:{M+3}], v{A}, {WS}, s{T+1} offen{SC}", "ststore")])
    g([wait_vm(("stcs", 0))])
    for d in range(4):
        g([f"v_lshlrev_b32 v{R_ACC+2*d}, 16, v{R_CS+d}", f"v_and_b32 v{R_ACC+1+2*d}, 0xffff0000, v{R_CS+d}"])
    for j in range(1, 8):
        g([wait_vm(("stcs", j))])
        for d in range(4):
            r = R_CS + 4*j + d
            t = B if d % 2 == 0 else W2
            g([f"v_lshlrev_b32 v{t}, 16, v{r}", f"v_and_b32 v{r}, 0xffff0000, v{r}"])
            g([f"v_add_f32 v{R_ACC+2*d}, v{R_ACC+2*d}, v{t}", f"v_add_f32 v{R_ACC+1+2*d}, v{R_ACC+1+2*d}, v{r}"])
    g([f"s_lshl_b32 s{T+7}, s{S_WAVE}, 11", f"s_add_u32 s{T+7}, s{T+7}, {LDS_SCR}",
       f"v_lshlrev_b32 v{A}, 9, v{VT+3}", f"v_lshl_add_u32 v{A}, v{VT+4}, 5, v{A}", f"v_add_u32 v{A}, s{T+7}, v{A}"])
    g([ds(f"ds_write_b128 v{A}, v[{R_ACC}:{R_ACC+3}]", None), ds(f"ds_write_b128 v{A}, v[{R_ACC+4}:{R_ACC+7}] offset:16", "stw")])
    G2 = []
    g = G2.append
    g([f"s_and_b32 s{T+7}, s{S_WAVE}, 1", f"s_lshl_b32 s{T+7}, s{T+7}, 8", f"v_lshlrev_b32 v{A}, 2, v0", f"v_add_u32 v{A}, s{T+7}, v{A}",
       f"v_add_u32 v{B}, {LDS_SCR}, v{A}"])
    for j in range(16):
        g([ds(f"ds_read_b32 v{R_CS+j}, v{B} offset:{512*j}", ("str", j))])
    g([f"s_mul_i32 s{T+6}, s{T+2}, {4992*8}", f"s_lshl_b32 s{T+7}, s{T+3}, 10", f"s_add_u32 s{T+6}, s{T+6}, s{T+7}", f"s_add_u32 s{T+6}, s{T+6}, {OFF_CS}",
       f"s_lshr_b32 s{T+7}, s{S_WAVE}, 1", f"s_lshl_b32 s{T+7}, s{T+7}, 25", f"s_add_u32 s{T+6}, s{T+6}, s{T+7}",
       f"v_lshlrev_b32 v{A}, 1, v{A}"])
    g([wait_ds(("str", 15))])
    for st in (8, 4, 2, 1):
        for j in range(st):
            g([f"v_add_f32 v{R_CS+j}, v{R_CS+j}, v{R_CS+j+st}"])
    g([f"v_mov_b32 v{R_CS+1}, s{S_NLO}", vm(f"buffer_store_dwordx2 v[{R_CS}:{R_CS+1}], v{A}, {WS}, s{T+6} offen{SC}", "ststore")])
    return G, G2
```

```python
import sys
from common import *
import common, hazard
common.STAMPS_ON = "--stamps" in sys.argv
import p_stats, p_gemm1 as g1, p_attn, p_gemm2 as g2
HDR = open("parallel_sum__sliding_block__glu_gated_glu__prompt.s.ref").read().split("; Override launch")[0]
NAME = "parallel_sum__sliding_block__glu_gated_glu__prompt_kernel"

a = Asm()
a.raw(f".globl {NAME}\n.p2align 8\n.type {NAME},@function\n{NAME}:")
a.op("s_cmp_ge_u32 s2, 256")
a.op("s_cbranch_scc1 L_end")
SRDS = [(SRD_X, 0, 2048*640*2), (SRD_WQKV, 8, 640*1920*2), (SRD_WG, 32, 640*1536*2), (SRD_WU, 40, 640*1536*2), (SRD_WS, 72, WS_BYTES),
        (SRD_DBG, 64, 256), (SRD_WO, 16, 640*640*2), (SRD_WD, 48, 1536*640*2), (SRD_OUT, 56, 2048*640*2)]
for d, off, n in SRDS:
    a.op(f"s_load_dwordx2 s[{d}:{d+1}], s[0:1], {off}")
a.op(f"s_getpc_b64 s[{SRD_TMP}:{SRD_TMP+1}]")
a.label("L_pc")
a.op(f"s_mov_b32 s{SRD_TMP+2}, L_codeend-L_pc")
a.op(f"s_mov_b32 s{SRD_TMP+3}, 0x20000")
a.op("v_lshlrev_b32 v1, 7, v0")
a.add(vm(f"buffer_load_dword v255, v1, s[{SRD_TMP}:{SRD_TMP+3}], 0 offen", "pf"))
a.op("v_add_u32 v1, 0x8000, v1")
a.add(vm(f"buffer_load_dword v254, v1, s[{SRD_TMP}:{SRD_TMP+3}], 0 offen", "pf"))
a.op("v_lshrrev_b32 v1, 6, v0")
a.op("v_and_b32 v0, 63, v0")
a.op(f"v_readfirstlane_b32 s{S_WAVE}, v1")
for d, off, n in SRDS:
    a.op(f"s_mov_b32 s{d+2}, {n}")
    a.op(f"s_mov_b32 s{d+3}, 0x20000")
p_stats.pre_addr(a)
g1.setup(a)
a.op("s_waitcnt lgkmcnt(0)")
a.add(nonce_publish_ops(p_stats.VN + 4))
stamp(a, 0)
p_stats.issue_loads(a)
a.add(nonce_issue_ops(p_stats.VN))
for f in range(0, 2):
    for g in g1.fill_ops(f): a.add(g)
dq = []
for f in range(2, g1.NSLOT): dq += g1.fill_ops(f)
s2 = g1.setup2(a)
for i, x in enumerate(s2):
    a.add(x)
    if i % 10 == 9 and dq: a.add(dq.pop(0))
G1, G2 = p_stats.compute_groups()
acc = 0
stamp(a, 1)
for gi, g in enumerate(G1):
    if gi == 1: stamp(a, 2)
    if isinstance(g[0], Ins) and g[0].tag == ("stcs", 0): stamp(a, 3)
    if isinstance(g[0], Ins) and g[0].tag == ("stcs", 1): stamp(a, 4)
    a.add(g); acc += cost(g)
    if acc >= 56 and dq:
        a.add(dq.pop(0)); acc = 0
stamp(a, 5)
a.add(wait_ds("stw"))
a.op("s_barrier")
stamp(a, 6)
for g in G2:
    a.add(g); acc += cost(g)
    if acc >= 56 and dq:
        a.add(dq.pop(0)); acc = 0
stamp(a, 7)
while dq: a.add(dq.pop(0))
stamp(a, 8)
stamp_save(a, 9, 0, vreg=126)
stamp_flush(a, vreg=126, area=1)
stamp(a, 1)

def tail_state(L):
    return [i for i in L if i.kind in ("vm", "ds", "reset", "wait_vm", "wait_ds") or (i.kind == "op" and i.text.startswith("s_waitcnt"))]
head = list(a.L)
a.op(f"s_cmp_ge_u32 s{g1.S_N}, 10")
a.op("s_cbranch_scc1 L_g1_V")
n0 = len(a.L)
g1.gemm1_body(a, "T")
bodyT = a.L[n0:]
a.op("s_branch L_g1_join")
b = Asm(); b.L = tail_state(head)
nhead = len(resolve(b.L).split("\n"))
n1 = len(b.L)
g1.gemm1_body(b, "V")
bodyV = b.L[n1:]
tT = [i.tag for i in bodyT if i.kind == "vm"][-48:]
tV = [i.tag for i in bodyV if i.kind == "vm"][-48:]
assert tT == tV, "variant tails differ"
txt = resolve(b.L).split("\n")[nhead:]
a.raw(".p2align 3")
a.label("L_g1_V")
a.raw("\n".join(txt))
a.label("L_g1_join")
stamp(a, 14)
stamp_save(a, 15, 0)

stamp(a, 0)
extra = {}
extra[0] = singles(g2.setup_ops())
extra[5] = [[wait_vm("st"), "s_barrier"] + flag_set_ops(3, 12, g1.S_FL)]
wq = []
for k in range(g2.NWB): wq += g2.w_fill(k)
extra[6] = wq
extra[27] = [poll_issue_ops(12, 15, "poll3")]
aq = []
for k in range(3): aq += g2.a_load(k)
extra[33] = [poll_check_ops(3, 12, 15, "poll3")] + aq
ns = p_attn.attn_compute(a, extra)
assert max(extra) < ns, ns
stamp(a, 1)
stamp(a, 2)
g2.gemm2_main(a, g2.NWB, 3)
stamp_save(a, 7, 1)
stamp_flush(a)
a.label("L_end")
a.op("s_endpgm")
a.label("L_codeend")
body, nh = hazard.fix(resolve(a.L))
out = [HDR.rstrip(), "; @launch grid=(256,1,1) block=(256,1,1) lds=163840", '.amdgcn_target "amdgcn-amd-amdhsa--gfx950"\n.text', body,
       '.section .rodata,"a"', descriptor(NAME)]
dst = sys.argv[1]
open(dst, "w").write("\n".join(out) + "\n")
print("wrote", dst, "hazard nops inserted:", nh, "stages", ns)
```
